```python
import torch

def _softmax(x, axis=-1):
    return torch.softmax(x, dim=axis)
def _gelu(x):
    return torch.nn.functional.gelu(x, approximate="tanh")
def _silu(x):
    return torch.nn.functional.silu(x)
def _sigmoid(x):
    return torch.sigmoid(x)
def _layernorm(x, axis=-1, eps=1e-5):
    m = x.mean(dim=axis, keepdim=True)
    v = x.var(dim=axis, keepdim=True, unbiased=False)
    return (x - m) / torch.sqrt(v + eps)
def _scatter_add(tgt, idx, src, axis=0):
    return tgt.clone().index_add_(axis, idx, src)
def _segment_sum(src, seg, n):
    out = torch.zeros((n,) + src.shape[1:], dtype=src.dtype)
    return out.index_add_(0, seg, src)
def _pad(x, pw):
    flat = tuple(v for pair in reversed(pw) for v in pair)
    return torch.nn.functional.pad(x, flat)

kernel_name = 'parallel_sum__linear_kernel_hedgehog__mixer_token_mlp__prompt'

def setup_inputs():

    _w = (lambda a: (lambda t: t.to(torch.bfloat16) if t.is_floating_point() else t)(torch.as_tensor(a)))
    def _A_setup():
        B, S, D, H = 1, 2048, 512, 32
        Dh = D // H
        return {
            "x": _w((lambda *s: torch.randn(*s, dtype=torch.bfloat16) * 0.05)(B, S, D)),
            "wqkv": _w((lambda *s: torch.randn(*s, dtype=torch.bfloat16) * 0.2)(D, 3 * D)),
            "w_phi": _w((lambda *s: torch.randn(*s, dtype=torch.bfloat16) * 0.2)(H, Dh, Dh) * (Dh ** -0.5)),
            "wo": _w((lambda *s: torch.randn(*s, dtype=torch.bfloat16) * 0.05)(D, D)),
        }
    _A_in = _A_setup()

    def _B_setup():
        B, S, D, F = 1, 2048, 512, 1376
        return {
            "x": _w((lambda *s: torch.randn(*s, dtype=torch.bfloat16) * 0.05)(B, S, D)),
            "w1": _w((lambda *s: torch.randn(*s, dtype=torch.bfloat16) * 0.8)(S, F) * (S ** -0.5)),
            "b1": _w((lambda *s: torch.randn(*s, dtype=torch.bfloat16) * 3.2)(F) * 0.02),
            "w2": _w((lambda *s: torch.randn(*s, dtype=torch.bfloat16) * 0.4)(F, S) * (F ** -0.5)),
            "b2": _w((lambda *s: torch.randn(*s, dtype=torch.bfloat16) * 1.6)(S) * 0.02),
        }
    _B_in = _B_setup()

    return {
        "A_x": _A_in["x"],
        "A_wqkv": _A_in["wqkv"],
        "A_w_phi": _A_in["w_phi"],
        "A_wo": _A_in["wo"],
        "B_x": _B_in["x"],
        "B_w1": _B_in["w1"],
        "B_b1": _B_in["b1"],
        "B_w2": _B_in["w2"],
        "B_b2": _B_in["b2"],
    }

def reference(A_x, A_wqkv, A_w_phi, A_wo, B_x, B_w1, B_b1, B_w2, B_b2):
    def _A_ref(x, wqkv, w_phi, wo):
        B, S, D = x.shape
        H = 32; Dh = D // H
        qkv = (lambda x, *d: x.permute(*d))((x @ wqkv).reshape(B, S, 3, H, Dh), 2, 0, 3, 1, 4)
        q, k, v = qkv[0], qkv[1], qkv[2]
        pq = torch.einsum("bhsd,hdf->bhsf", q, w_phi)
        pk = torch.einsum("bhsd,hdf->bhsf", k, w_phi)
        phi_q = torch.concatenate([_softmax(pq, axis=-1), _softmax(-pq, axis=-1)], axis=-1)
        phi_k = torch.concatenate([_softmax(pk, axis=-1), _softmax(-pk, axis=-1)], axis=-1)
        kv = torch.einsum("bhsf,bhsd->bhfd", phi_k, v)
        z  = torch.einsum("bhsf->bhf", phi_k)
        num = torch.einsum("bhqf,bhfd->bhqd", phi_q, kv)
        den = torch.einsum("bhqf,bhf->bhq", phi_q, z)[..., None] + 1e-6
        o = num / den
        return (lambda x, *d: x.permute(*d))(o, 0, 2, 1, 3).reshape(B, S, D) @ wo

    def _B_ref(x, w1, b1, w2, b2):
        B, S, D = x.shape
        h = _layernorm(x, axis=-1)
        u = torch.einsum("bsd,sf->bdf", h, w1) + b1
        u = _gelu(u)
        y = torch.einsum("bdf,fs->bds", u, w2) + b2
        return (lambda x, *d: x.permute(*d))(y, 0, 2, 1)

    x = A_x
    xn = _layernorm(x, axis=-1)
    return x + _A_ref(xn, A_wqkv, A_w_phi, A_wo) + _B_ref(xn, B_w1, B_b1, B_w2, B_b2)
```

```python
import re, sys

REG_RE = re.compile(r'^(-?)\|?(v|s|a)(?:(\d+)|\[(\d+):(\d+)\])\|?$')

def parse_reg(tok):
    tok = tok.strip()
    m = re.match(r'^(?:neg|abs)\((.*)\)$', tok)
    if m: tok = m.group(1)
    if tok in ('vcc',): return [('s', 106), ('s', 107)]
    if tok == 'vcc_lo': return [('s', 106)]
    if tok == 'vcc_hi': return [('s', 107)]
    if tok == 'exec': return [('s', 126), ('s', 127)]
    if tok == 'exec_lo': return [('s', 126)]
    if tok == 'exec_hi': return [('s', 127)]
    if tok == 'm0': return [('s', 124)]
    m = REG_RE.match(tok)
    if not m: return []
    f = m.group(2)
    if m.group(3) is not None:
        lo = hi = int(m.group(3))
    else:
        lo, hi = int(m.group(4)), int(m.group(5))
    return [(f, i) for i in range(lo, hi + 1)]

def split_ops(s):
    ops, mods, depth, cur = [], [], 0, ''
    for ch in s + ',':
        if ch in '[(': depth += 1
        elif ch in '])': depth -= 1
        if ch == ',' and depth == 0:
            parts = cur.split()
            if parts:
                ops.append(parts[0]); mods += parts[1:]
            cur = ''
        else:
            cur += ch
    return ops, mods

TRANS = ('v_exp_f32', 'v_log_f32', 'v_rcp_f32', 'v_rsq_f32', 'v_sqrt_f32', 'v_sin_f32', 'v_cos_f32', 'v_rcp_iflag_f32')
NO_DST_S = ('s_cmp', 's_waitcnt', 's_barrier', 's_branch', 's_cbranch', 's_nop', 's_setprio', 's_sleep', 's_endpgm', 's_bitcmp', 's_sendmsg')

class Inst:
    __slots__ = ('text', 'mn', 'ops', 'mods', 'dst', 'src', 'kind', 'label', 'target', 'ldst', 'lsrc', 'srcC', 'srcAB', 'passes', 'comment')
    def __init__(self, text, ldst=None, lsrc=None):
        self.label = None; self.target = None
        self.ldst = ldst; self.lsrc = lsrc
        self.text = text
        body = text.split(';')[0].strip()
        if body.endswith(':'):
            self.label = body[:-1]; self.mn = None; self.kind = 'label'; self.dst = set(); self.src = set(); return
        if body == '' or body.startswith('.'):
            self.mn = None; self.kind = 'dir'; self.dst = set(); self.src = set(); return
        parts = body.split(None, 1)
        mn = parts[0]; self.mn = mn
        ops, mods = split_ops(parts[1]) if len(parts) > 1 else ([], [])
        self.ops, self.mods = ops, mods
        R = [parse_reg(o) for o in ops]
        for md in mods:
            if md.startswith('offset:'):
                ov = int(md[7:], 0)
                if mn.startswith('buffer_'): assert 0 <= ov < 4096, text
                if mn.startswith('ds_'): assert 0 <= ov < 65536, text
                if mn.startswith('global_'): assert -4096 <= ov < 4096, text
        dst, src = [], []
        self.srcC = set(); self.srcAB = set(); self.passes = 0
        if mn.startswith('v_mfma'):
            self.kind = 'mfma'
            dst = R[0]; src = R[1] + R[2] + R[3]
            self.srcC = set(R[3]); self.srcAB = set(R[1] + R[2])
            self.passes = 8 if '32x32' in mn else 4
        elif mn.startswith('v_cmp'):
            self.kind = 'valu'; dst = R[0]; src = sum(R[1:], [])
        elif mn.startswith('v_permlane') and 'swap' in mn:
            self.kind = 'valu'; dst = R[0] + R[1]; src = R[0] + R[1]
        elif mn.startswith('v_'):
            self.kind = 'valu'
            dst = R[0]; rest = R[1:]
            if '_co_' in mn:
                dst = dst + R[1]; rest = R[2:]
            src = sum(rest, [])
            if mn.startswith(('v_dot2c', 'v_fmac', 'v_pk_fmac')) : src += R[0]
            if mn.startswith('v_cndmask') and len(ops) == 3: src += parse_reg('vcc')
            if mn.startswith('v_writelane'): src += R[0]
        elif mn.startswith('ds_read') or mn.startswith('ds_bpermute') or mn.startswith('ds_swizzle'):
            self.kind = 'ds'; dst = R[0]; src = sum(R[1:], [])
        elif mn.startswith('ds_'):
            self.kind = 'ds'; src = sum(R, [])
        elif mn.startswith('buffer_inv') or mn.startswith('buffer_wbl2'):
            self.kind = 'vmem'
        elif mn.startswith('buffer_load'):
            self.kind = 'vmem'
            if 'lds' in mods:
                src = sum(R, []) + parse_reg('m0')
            else:
                dst = R[0]; src = sum(R[1:], [])
                if 'd16' in mn: src += R[0]
        elif mn.startswith('buffer_store') or mn.startswith('buffer_atomic'):
            self.kind = 'vmem'; src = sum(R, [])
            if mn.startswith('buffer_atomic') and 'sc0' in mods: dst = R[0]
        elif mn.startswith('global_load'):
            self.kind = 'vmem'
            if 'lds' in mn: src = sum(R, []) + parse_reg('m0')
            else: dst = R[0]; src = sum(R[1:], [])
        elif mn.startswith('global_store'):
            self.kind = 'vmem'; src = sum(R, [])
        elif mn.startswith('global_atomic'):
            self.kind = 'vmem'
            if 'sc0' in mods: dst = R[0]; src = sum(R[1:], [])
            else: src = sum(R, [])
        elif mn.startswith('s_load') or mn.startswith('s_memtime') or mn.startswith('s_memrealtime') or mn.startswith('s_buffer_load'):
            self.kind = 'smem'; dst = R[0]; src = sum(R[1:], [])
        elif mn.startswith('s_'):
            self.kind = 'salu'
            if mn.startswith(NO_DST_S):
                src = sum(R, [])
                if mn.startswith('s_branch') or mn.startswith('s_cbranch'):
                    self.target = ops[0]
            else:
                dst = R[0]; src = sum(R[1:], [])
                if 'saveexec' in mn: dst = dst + parse_reg('exec'); src += parse_reg('exec')
                if mn in ('s_addk_i32', 's_mulk_i32'): src += R[0]
        else:
            raise ValueError('unknown instr ' + text)
        self.dst = set(dst); self.src = set(src)

    def is_real(self): return self.kind not in ('label', 'dir')
    def slots(self):
        if self.mn == 's_nop': return int(self.ops[0], 0) + 1
        return 1 if self.is_real() else 0
    def is_dpp(self): return self.kind == 'valu' and ('_dpp' in self.mn or any(m.startswith(('quad_perm', 'row_', 'wave_')) for m in self.mods))
    def is_trans(self): return self.mn is not None and self.mn.split('_e32')[0].split('_e64')[0] in TRANS
    def is_dot(self): return self.mn is not None and self.mn.startswith('v_dot')

def vset(s): return {r for r in s if r[0] in 'va'}
def sset(s): return {r for r in s if r[0] == 's'}

def required_gap(p, c):
    need = 0
    if not p.is_real() or not c.is_real(): return 0
    pk, ck = p.kind, c.kind
    if pk == 'valu':
        pv = vset(p.dst); ps = sset(p.dst)
        if ck == 'mfma' and pv & c.src: need = max(need, 2 if not p.is_dot() else 3)
        if ck == 'valu':
            if c.is_dpp() and pv & c.src: need = max(need, 2)
            if c.mn.startswith('v_permlane') and pv & c.src: need = max(need, 2)
            if c.mn.startswith(('v_readlane', 'v_readfirstlane')) and pv & c.src: need = max(need, 1)
            if p.is_trans() and (pv & c.src): need = max(need, 1)
            if ps & c.src:
                need = max(need, 4 if c.mn.startswith(('v_readlane', 'v_writelane')) else 2)
            if p.is_dot() and (pv & (c.src | c.dst)):
                if c.mn == p.mn:
                    ab = set(parse_reg(c.ops[1]) + parse_reg(c.ops[2]))
                    if pv & ab: need = max(need, 3)
                else: need = max(need, 3)
        if ck in ('vmem', 'ds'):
            if ps & c.src: need = max(need, 5)
            if p.is_trans() and (pv & c.src): need = max(need, 1)
            if p.is_dot() and (pv & c.src): need = max(need, 3)
        if ('s', 126) in ps or ('s', 127) in ps:
            if ck == 'mfma': need = max(need, 4)
    if pk == 'mfma':
        D = p.dst
        n_ab = {4: 8, 8: 12}[p.passes]
        n_part = {4: 6, 8: 10}[p.passes]
        if ck == 'mfma':
            if D & c.srcAB: need = max(need, n_ab)
            if D & c.srcC:
                if c.srcC == D and c.passes == p.passes: pass
                else: need = max(need, n_part)
            if (D & c.dst) and not (c.srcC == D and c.passes == p.passes): need = max(need, n_ab)
        if ck == 'valu' and (D & (c.src | c.dst)): need = max(need, n_ab)
        if ck in ('vmem', 'ds') and (D & (c.src | c.dst)): need = max(need, n_ab)
        if ck == 'valu' and (p.srcC & c.dst): need = max(need, {4: 3, 8: 7}[p.passes])
    if pk == 'salu' and ('s', 124) in p.dst:
        if ck == 'vmem' and ('s', 124) in c.src: need = max(need, 1)
    if pk == 'vmem' and (p.mn.startswith(('buffer_store', 'global_store'))) and ('x4' in p.mn or 'x3' in p.mn):
        data = set(parse_reg(p.ops[0] if p.mn.startswith('buffer') else p.ops[1]))
        if data & c.dst: need = max(need, 2 if ck == 'valu' else 1)
    return need

class Prog:
    def __init__(self):
        self.ins = []
        self.nlabel = 0
    def __call__(self, text, **kw):
        for line in text.strip('\n').split('\n'):
            line = line.strip()
            if not line: continue
            if line.startswith(';'):
                self.ins.append(Inst('; ' + line[1:].strip())); self.ins[-1].kind = 'dir'; continue
            self.ins.append(Inst(line, **kw))
    def label(self, name): self.ins.append(Inst(name + ':'))
    def newlabel(self, base='L'):
        self.nlabel += 1
        return f'{base}_{self.nlabel}'

    def preds(self):
        ins = self.ins
        lab = {i.label: k for k, i in enumerate(ins) if i.label}
        preds = [[] for _ in ins]
        for k, i in enumerate(ins):
            if k + 1 < len(ins) and not (i.mn in ('s_branch', 's_endpgm')):
                preds[k + 1].append(k)
            if i.target:
                preds[lab[i.target]].append(k)
        return preds

    def pad_hazards(self, verbose=False):
        total = 0
        while True:
            ins = self.ins; preds = self.preds()
            fixes = {}
            for k, c in enumerate(ins):
                if not c.is_real(): continue
                worst = 0
                stack = [(p, 0) for p in preds[k]]
                seen = {}
                while stack:
                    j, dist = stack.pop()
                    if dist >= 12: continue
                    if j in seen and seen[j] <= dist: continue
                    seen[j] = dist
                    pj = ins[j]
                    g = required_gap(pj, c)
                    if g > dist:
                        worst = max(worst, g - dist)
                        if verbose: print(f'hazard: [{pj.text}] -> [{c.text}] need {g} have {dist}', file=sys.stderr)
                    nd = dist + pj.slots()
                    for q in preds[j]: stack.append((q, nd))
                if worst: fixes[k] = worst
            if not fixes: break
            k0 = min(fixes)
            ks = sorted(fixes); chosen = []
            last = -100
            for k in ks:
                if k - last > 16: chosen.append(k); last = k
            for k in reversed(chosen):
                self.ins.insert(k, Inst(f's_nop {fixes[k]-1}'))
                total += fixes[k]
        return total

    def check_waitcnt(self, entry_label, maxstates=200000):
        ins = self.ins
        lab = {i.label: k for k, i in enumerate(ins) if i.label}
        start = lab[entry_label]
        errors = set()
        seen = set()
        stack = [(start, (), ())]
        n = 0
        while stack:
            k, vm, lg = stack.pop()
            while True:
                if k >= len(ins): break
                i = ins[k]
                if i.kind == 'label':
                    key = (k, vm, lg)
                    if key in seen: k = None; break
                    seen.add(key); n += 1
                    if n > maxstates:
                        print('waitcnt check: too many states', file=sys.stderr); return errors
                    k += 1; continue
                if i.kind == 'dir': k += 1; continue
                touched = set(i.src) | set(i.dst)
                if i.lsrc: touched |= {('L', x) for x in ([i.lsrc] if isinstance(i.lsrc, str) else i.lsrc)}
                for q, name in ((vm, 'vm'), (lg, 'lgkm')):
                    for pend in q:
                        if pend and (touched & set(pend)):
                            if name == 'vm' and i.kind == 'vmem' and 'd16' in i.mn and not (set(i.src) - set(i.dst)) & set(pend): continue
                            errors.add((k, name, i.text, tuple(sorted(touched & set(pend)))[:3]))
                if i.ldst:
                    for pend in lg:
                        if ('LR', i.ldst) in pend: errors.add((k, 'ldsWAR', i.text, ()))
                if i.mn == 's_waitcnt':
                    t = i.text
                    m = re.search(r'vmcnt\((\d+)\)', t)
                    if m:
                        N = int(m.group(1)); vm = vm[len(vm) - N:] if N < len(vm) else vm
                        if N == 0: vm = ()
                    m = re.search(r'lgkmcnt\((\d+)\)', t)
                    if m:
                        N = int(m.group(1))
                        if N == 0: lg = ()
                        else:
                            if any(('SM',) in p for p in lg): pass
                            else: lg = lg[len(lg) - N:] if N < len(lg) else lg
                elif i.kind == 'vmem':
                    d = tuple(sorted(i.dst)) + ((('L', i.ldst),) if i.ldst else ())
                    vm = vm + (d,)
                    if len(vm) > 63: vm = vm[-63:]; errors.add((k, 'vmcnt overflow', i.text, ()))
                elif i.kind == 'ds':
                    d = tuple(sorted(i.dst))
                    if i.lsrc: d = d + tuple(('LR', x) for x in ([i.lsrc] if isinstance(i.lsrc, str) else i.lsrc))
                    lg = lg + (d,)
                    if len(lg) > 40: lg = lg[-40:]
                elif i.kind == 'smem':
                    lg = lg + (tuple(sorted(i.dst)) + (('SM',),),)
                if i.mn == 's_endpgm': break
                if i.target:
                    if i.mn == 's_branch': k = lab[i.target]; continue
                    stack.append((lab[i.target], vm, lg))
                k += 1
        return errors

    def text(self):
        out = []
        for i in self.ins:
            if i.kind == 'label' or (i.kind == 'dir' and not i.text.startswith(';')): out.append(i.text)
            else: out.append('    ' + i.text)
        return '\n'.join(out) + '\n'

class Regs:
    def __init__(self, f, start, limit):
        self.f, self.next, self.limit, self.hi = f, start, limit, start
        self.names = {}
    def alloc(self, n=1, align=1, name=None):
        a = (self.next + align - 1) // align * align
        self.next = a + n
        assert self.next <= self.limit, f'out of {self.f} regs'
        self.hi = max(self.hi, self.next)
        return a
    def mark(self): return self.next
    def release(self, m): self.next = m

def v(i, n=1): return f'v{i}' if n == 1 else f'v[{i}:{i+n-1}]'
def s(i, n=1): return f's{i}' if n == 1 else f's[{i}:{i+n-1}]'
def a(i, n=1): return f'a{i}' if n == 1 else f'a[{i}:{i+n-1}]'
```

```python
import sys, struct
from asmlib import *

NAME = 'parallel_sum__linear_kernel_hedgehog__mixer_token_mlp__prompt'
S_, D_, H_, F_ = 2048, 512, 32, 1376
HF_OFF = 0
UF_OFF = 4 << 20
OF_OFF = 8 << 20
KV_OFF = 12 << 20
PQ_OFF = 16 << 20
KV_BYTES = 32 * 17 * 32 * 4
UF_BYTES = 86 * 16384
LOG2E = 1.4426950408889634
def f2u(x): return struct.unpack('<I', struct.pack('<f', x))[0]

class VM:
    def __init__(self, p): self.p = p; self.q = []
    def issue(self, text, tag, **kw):
        self.p(text, **kw); self.q.append(tag)
    def wait(self, tag, extra=''):
        if tag not in self.q:
            if extra: self.p('s_waitcnt' + extra)
            return
        idx = max(i for i, t in enumerate(self.q) if t == tag)
        n = len(self.q) - 1 - idx
        assert n <= 63
        self.p(f's_waitcnt vmcnt({n}){extra}')
        self.q = self.q[idx + 1:]
    def has(self, tag): return tag in self.q

def srd(p, d, base_lo, nbytes, add=0):
    if add:
        p(f's_add_u32 s{d}, s{base_lo}, {add:#x}')
        p(f's_addc_u32 s{d+1}, s{base_lo+1}, 0')
    else:
        p(f's_mov_b32 s{d}, s{base_lo}')
        p(f's_mov_b32 s{d+1}, s{base_lo+1}')
    p(f's_mov_b32 s{d+2}, {nbytes:#x}')
    p(f's_mov_b32 s{d+3}, 0x20000')

def load_args(p):
    p('s_load_dwordx16 s[4:19], s[0:1], 0')
    p('s_load_dwordx8 s[20:27], s[0:1], 64')
P_X, P_WQKV, P_WPHI, P_WO, P_BX, P_W1, P_B1, P_W2, P_B2, P_OUT, P_DBG, P_WS = 4, 6, 8, 10, 12, 14, 16, 18, 20, 22, 24, 26

def tile_map(p, s_t, s_h):
    p(f'''
    s_and_b32 s28, s2, 7
    s_lshr_b32 s29, s2, 3
    s_lshr_b32 s{s_t}, s28, 1
    s_lshl_b32 s{s_t}, s{s_t}, 3
    s_and_b32 s30, s29, 7
    s_add_u32 s{s_t}, s{s_t}, s30
    s_and_b32 s{s_h}, s28, 1
    s_lshl_b32 s{s_h}, s{s_h}, 2
    s_lshr_b32 s30, s29, 3
    s_add_u32 s{s_h}, s{s_h}, s30
    ''')

def k_zero(p):
    p.label('zero_kernel')
    p('s_cmp_ge_u32 s2, 17')
    p('s_cbranch_scc1 zero_done')
    load_args(p)
    p('s_waitcnt lgkmcnt(0)')
    srd(p, 32, P_WS, KV_BYTES, KV_OFF)
    p('''
    s_lshl_b32 s3, s2, 12
    v_lshlrev_b32 v1, 4, v0
    v_mov_b32 v4, 0
    v_mov_b32 v5, 0
    v_mov_b32 v6, 0
    v_mov_b32 v7, 0
    buffer_store_dwordx4 v[4:7], v1, s[32:35], s3 offen
    ''')
    p.label('zero_done')
    p('s_endpgm')
    return dict(name='zero_kernel', vgpr=8, sgpr=40, grid=17, block=256, lds=0)

def softmax_pm(p, P, E, T, PH, sL2E):
    mx, mn, a, b = T, T + 1, T + 2, T + 3
    p(f'v_max3_f32 {v(mx)}, {v(P)}, {v(P+1)}, {v(P+2)}')
    p(f'v_min3_f32 {v(mn)}, {v(P)}, {v(P+1)}, {v(P+2)}')
    for i in range(3, 15, 2):
        p(f'v_max3_f32 {v(mx)}, {v(mx)}, {v(P+i)}, {v(P+i+1)}')
        p(f'v_min3_f32 {v(mn)}, {v(mn)}, {v(P+i)}, {v(P+i+1)}')
    p(f'v_max_f32 {v(mx)}, {v(mx)}, {v(P+15)}')
    p(f'v_min_f32 {v(mn)}, {v(mn)}, {v(P+15)}')
    p(f'v_mul_f32 {v(mx)}, s{sL2E}, {v(mx)}')
    p(f'v_mul_f32 {v(mn)}, s{sL2E}, {v(mn)}')
    for i in range(16):
        p(f'v_fma_f32 {v(E+i)}, {v(P+i)}, s{sL2E}, -{v(mx)}')
        p(f'v_fma_f32 {v(E+16+i)}, -{v(P+i)}, s{sL2E}, {v(mn)}')
    for i in range(32):
        p(f'v_exp_f32 {v(E+i)}, {v(E+i)}')
    for h in range(2):
        base = E + 16 * h; t = P + 8 * h
        for i in range(4):
            p(f'v_pk_add_f32 {v(t+2*i,2)}, {v(base+4*i,2)}, {v(base+4*i+2,2)}')
        p(f'v_pk_add_f32 {v(t,2)}, {v(t,2)}, {v(t+2,2)}')
        p(f'v_pk_add_f32 {v(t+4,2)}, {v(t+4,2)}, {v(t+6,2)}')
        p(f'v_pk_add_f32 {v(t,2)}, {v(t,2)}, {v(t+4,2)}')
        p(f'v_add_f32 {v(t)}, {v(t)}, {v(t+1)}')
    p(f'v_rcp_f32 {v(T+4)}, {v(P)}')
    p(f'v_rcp_f32 {v(T+6)}, {v(P+8)}')
    for h in range(2):
        base = E + 16 * h; r = T + 4 + 2 * h
        for i in range(8):
            p(f'v_pk_mul_f32 {v(base+2*i,2)}, {v(base+2*i,2)}, {v(r,2)} op_sel_hi:[1,0]')
        for i in range(8):
            p(f'v_cvt_pk_bf16_f32 {v(PH+8*h+i)}, {v(base+2*i)}, {v(base+2*i+1)}')

def k_qkv(p):
    WB, XB = 0, 98304
    R = Regs('v', 1, 256)
    vm = VM(p)
    p.label('qkv_kernel')
    p('s_cmp_ge_u32 s2, 256')
    p('s_cbranch_scc1 qkv_done')
    load_args(p)
    sT, sH, sW = 31, 3, 33
    tile_map(p, sT, sH)
    lane = R.alloc(); t0 = R.alloc(); t1 = R.alloc(); t2 = R.alloc(); t3 = R.alloc()
    p(f'v_and_b32 {v(lane)}, 63, v0')
    p(f'v_lshrrev_b32 {v(t0)}, 6, v0')
    p(f'v_readfirstlane_b32 s{sW}, {v(t0)}')
    p('s_waitcnt lgkmcnt(0)')
    SX, SWQ, SPH, SWS, SKV = 36, 40, 44, 48, 52
    srd(p, SX, P_X, S_ * D_ * 2)
    srd(p, SWQ, P_WQKV, D_ * 3 * D_ * 2)
    srd(p, SPH, P_WPHI, H_ * 256 * 2)
    srd(p, SWS, P_WS, 32 << 20)
    srd(p, SKV, P_WS, KV_BYTES, KV_OFF)
    sL2E = 34
    p(f's_mov_b32 s{sL2E}, {f2u(LOG2E):#x}')
    XR = R.alloc(32, 4)
    sub = R.alloc(); tl = R.alloc()
    p(f'v_and_b32 {v(sub)}, 7, v0')
    p(f'v_lshrrev_b32 {v(tl)}, 3, v0')
    p(f'v_lshlrev_b32 {v(t0)}, 10, {v(tl)}')
    p(f'v_lshl_add_u32 {v(t0)}, {v(sub)}, 4, {v(t0)}')
    p(f's_lshl_b32 s56, s{sT}, 16')
    for i in range(8):
        vm.issue(f'buffer_load_dwordx4 {v(XR+4*i,4)}, {v(t0)}, s[{SX}:{SX+3}], s56 offen offset:{i*128}', 'x')
    vW = R.alloc()
    p(f'v_bfe_u32 {v(t1)}, v0, 4, 1')
    p(f'v_lshlrev_b32 {v(t1)}, 2, {v(t1)}')
    p(f'v_xor_b32 {v(t1)}, {v(t1)}, {v(sub)}')
    p(f'v_mul_u32_u24 {v(vW)}, 3072, {v(tl)}')
    p(f'v_lshl_add_u32 {v(vW)}, {v(t1)}, 4, {v(vW)}')
    p(f's_lshl_b32 s57, s{sH}, 7')
    p(f'v_add_u32 {v(vW)}, s57, {v(vW)}')
    p(f's_lshl_b32 s58, s{sW}, 10')
    def dma_w(c):
        slot = c & 3
        for part in range(3):
            p(f's_add_u32 m0, s58, {WB + slot*24576 + part*(8192-1024)}')
            p(f's_mov_b32 s59, {c*64*3072}')
            vm.issue(f'buffer_load_dwordx4 {v(vW)}, s[{SWQ}:{SWQ+3}], s59 offen offset:{part*1024} lds', f'W{c}', ldst=f'W{slot}')
    for c in range(4): dma_w(c)
    WP = R.alloc(4, 4)
    hh = R.alloc(); hm = R.alloc()
    p(f'v_lshrrev_b32 {v(hh)}, 5, {v(lane)}')
    p(f'v_bfe_u32 {v(hm)}, {v(lane)}, 2, 1')
    p(f'v_bfe_u32 {v(t1)}, {v(lane)}, 3, 2')
    p(f'v_and_b32 {v(t2)}, 3, {v(lane)}')
    p(f'v_lshl_add_u32 {v(t1)}, {v(t1)}, 2, {v(t2)}')
    p(f'v_lshlrev_b32 {v(t1)}, 1, {v(t1)}')
    p(f'v_lshl_add_u32 {v(t1)}, {v(hh)}, 7, {v(t1)}')
    p(f'v_lshl_add_u32 {v(t1)}, {v(hm)}, 9, {v(t1)}')
    p(f's_and_b32 s59, s{sW}, 1')
    p(f's_lshl_b32 s60, s{sH}, 1')
    p(f's_add_u32 s60, s60, s59')
    p(f's_lshl_b32 s61, s60, 10')
    WP8 = R.alloc(8)
    for i in range(8):
        d = 8 * (i >> 2) + (i & 3)
        vm.issue(f'buffer_load_ushort {v(WP8+i)}, {v(t1)}, s[{SPH}:{SPH+3}], s61 offen offset:{d*32}', 'phi')
    XD = R.alloc(64, 4)
    sm = R.alloc(2, 2); r1 = R.alloc(2, 2); r2 = R.alloc()
    p('s_mov_b32 s62, 0x3f803f80')
    p(f'v_mov_b32 {v(sm)}, 0')
    p(f'v_mov_b32 {v(sm+1)}, 0')
    vm.wait('x')
    for i in range(32):
        p(f'v_dot2c_f32_bf16 {v(sm + (i&1))}, s62, {v(XR+i)}')
    for i in range(32):
        p(f'v_lshlrev_b32 {v(XD+2*i)}, 16, {v(XR+i)}')
        p(f'v_and_b32 {v(XD+2*i+1)}, 0xffff0000, {v(XR+i)}')
    p(f'v_add_f32 {v(sm)}, {v(sm)}, {v(sm+1)}')
    def red8(r):
        p(f'v_add_f32_dpp {v(r)}, {v(r)}, {v(r)} quad_perm:[1,0,3,2] row_mask:0xf bank_mask:0xf')
        p(f'v_add_f32_dpp {v(r)}, {v(r)}, {v(r)} quad_perm:[2,3,0,1] row_mask:0xf bank_mask:0xf')
        p(f'v_add_f32_dpp {v(r)}, {v(r)}, {v(r)} row_half_mirror row_mask:0xf bank_mask:0xf')
    red8(sm)
    p(f'v_mul_f32 {v(sm)}, {f2u(-1.0/512):#x}, {v(sm)}')
    for i in range(32):
        p(f'v_pk_add_f32 {v(XD+2*i,2)}, {v(XD+2*i,2)}, {v(sm,2)} op_sel_hi:[1,0]')
    p(f'v_pk_mul_f32 {v(r1,2)}, {v(XD,2)}, {v(XD,2)}')
    p(f'v_pk_mul_f32 {v(t2,2)}, {v(XD+2,2)}, {v(XD+2,2)}') if t2 % 2 == 0 else None
    acc2 = t2 if t2 % 2 == 0 else None
    assert acc2 is not None
    for i in range(2, 32):
        tgt = r1 if i % 2 == 0 else acc2
        p(f'v_pk_fma_f32 {v(tgt,2)}, {v(XD+2*i,2)}, {v(XD+2*i,2)}, {v(tgt,2)}')
    p(f'v_pk_add_f32 {v(r1,2)}, {v(r1,2)}, {v(acc2,2)}')
    p(f'v_add_f32 {v(r1)}, {v(r1)}, {v(r1+1)}')
    red8(r1)
    p(f'v_mov_b32 {v(t0)}, {f2u(1e-5):#x}')
    p(f'v_mul_f32 {v(t1)}, {f2u(1.0/512):#x}, {v(r1)}')
    p(f'v_add_f32 {v(r1)}, {v(t1)}, {v(t0)}')
    p(f'v_rsq_f32 {v(r1)}, {v(r1)}')
    p(f'v_mul_f32 {v(r2)}, {v(r1)}, {v(r1)}')
    p(f'v_fma_f32 {v(r2)}, {v(r2)}, {v(t1)}, {v(t0)}')
    p(f'v_rsq_f32 {v(r2)}, {v(r2)}')
    for i in range(32):
        p(f'v_pk_mul_f32 {v(XD+2*i,2)}, {v(XD+2*i,2)}, {v(r1,2)} op_sel_hi:[1,0]')
    for i in range(32):
        p(f'v_cvt_pk_bf16_f32 {v(XR+i)}, {v(XD+2*i)}, {v(XD+2*i+1)}')
    p(f'v_and_b32 {v(t0)}, 31, {v(tl)}')
    p(f'v_xor_b32 {v(t0)}, {v(t0)}, {v(sub)}')
    p(f'v_lshlrev_b32 {v(t0)}, 4, {v(t0)}')
    p(f'v_lshl_add_u32 {v(t0)}, {v(sub)}, 9, {v(t0)}')
    p(f'v_lshrrev_b32 {v(t1)}, 5, {v(tl)}')
    p(f'v_lshl_add_u32 {v(t0)}, {v(t1)}, 15, {v(t0)}')
    p(f'v_add_u32 {v(t0)}, {XB}, {v(t0)}')
    for i in range(8):
        p(f'ds_write_b128 {v(t0)}, {v(XR+4*i,4)} offset:{i*4096}')

    sR2 = 64
    for j in range(8): p(f'v_readlane_b32 s{sR2+j}, {v(r2)}, {8*j}')
    HT = R.alloc(4, 4); HO = R.alloc(4, 4)
    q16 = R.alloc(); rr = R.alloc(); cc = R.alloc()
    p(f'v_lshrrev_b32 {v(q16)}, 4, {v(lane)}')
    p(f'v_bfe_u32 {v(rr)}, {v(lane)}, 2, 2')
    p(f'v_and_b32 {v(cc)}, 3, {v(lane)}')
    p(f'v_lshrrev_b32 {v(t0)}, 1, {v(cc)}')
    p(f'v_lshl_add_u32 {v(t0)}, {v(q16)}, 1, {v(t0)}')
    p(f's_lshl_b32 s59, s{sW}, 3')
    p(f's_and_b32 s59, s59, 31')
    p(f's_lshr_b32 s63, s{sW}, 2')
    p(f's_lshl_b32 s63, s63, 15')
    p(f's_lshl_b32 s72, s{sH}, 12')
    p(f's_add_u32 s63, s63, s72')
    p(f's_add_u32 s63, s63, {XB}')
    for n in range(2):
        p(f'v_add_u32 {v(t1)}, s59, {v(rr)}')
        if n: p(f'v_add_u32 {v(t1)}, 4, {v(t1)}')
        p(f'v_xor_b32 {v(t1)}, {v(t1)}, {v(t0)}')
        p(f'v_lshlrev_b32 {v(t1)}, 4, {v(t1)}')
        p(f'v_lshl_add_u32 {v(t1)}, {v(t0)}, 9, {v(t1)}')
        p(f'v_and_b32 {v(t2)}, 1, {v(cc)}')
        p(f'v_lshl_add_u32 {v(t1)}, {v(t2)}, 3, {v(t1)}')
        p(f'v_add_u32 {v(t1)}, s63, {v(t1)}')
        if n == 0: p('s_waitcnt lgkmcnt(0)')
        p(f'ds_read_b64_tr_b16 {v(HT+2*n,2)}, {v(t1)}')
    p(f'v_and_b32 {v(t0)}, 15, {v(lane)}')
    p(f'v_lshlrev_b32 {v(t0)}, 4, {v(t0)}')
    p(f'v_lshl_add_u32 {v(t0)}, {v(q16)}, 10, {v(t0)}')
    p(f's_lshr_b32 s59, s{sW}, 2')
    p(f's_lshl_b32 s63, s{sT}, 1')
    p(f's_add_u32 s59, s59, s63')
    p(f's_lshl_b32 s59, s59, 15')
    p(f's_add_u32 s59, s59, s72')
    p(f's_and_b32 s63, s{sW}, 3')
    p(f's_lshl_b32 s63, s63, 8')
    p(f's_add_u32 s59, s59, s63')
    if HF_OFF: p(f's_add_u32 s59, s59, {HF_OFF}')
    p('s_waitcnt lgkmcnt(0)')
    for i in range(4):
        p(f'v_lshlrev_b32 {v(t1)}, 16, {v(HT+i)}')
        p(f'v_and_b32 {v(t2)}, 0xffff0000, {v(HT+i)}')
        p(f'v_mul_f32 {v(t1)}, s{sR2+2*i}, {v(t1)}')
        p(f'v_mul_f32 {v(t2)}, s{sR2+2*i+1}, {v(t2)}')
        p(f'v_cvt_pk_bf16_f32 {v(HO+i)}, {v(t1)}, {v(t2)}')
    vm.issue(f'buffer_store_dwordx4 {v(HO,4)}, {v(t0)}, s[{SWS}:{SWS+3}], s59 offen', 'hst')

    ACC = XD
    FR = [R.alloc(32, 4), XR]
    aX = R.alloc(2); aWr = R.alloc(2)
    p(f's_lshr_b32 s73, s{sW}, 2')
    p(f's_bfe_u32 s74, s{sW}, 0x10001')
    p(f's_and_b32 s75, s{sW}, 1')
    p(f'v_and_b32 {v(t0)}, 31, {v(lane)}')
    for e in range(2):
        p(f's_lshl_b32 s59, s73, 2')
        p(f's_add_u32 s59, s59, {2*e}')
        p(f'v_add_u32 {v(t1)}, s59, {v(hh)}')
        p(f'v_xor_b32 {v(t2)}, {v(t0)}, {v(t1)}')
        p(f'v_lshlrev_b32 {v(t2)}, 4, {v(t2)}')
        p(f'v_lshl_add_u32 {v(t2)}, {v(t1)}, 9, {v(t2)}')
        p(f's_lshl_b32 s59, s74, 15')
        p(f's_add_u32 s59, s59, {XB}')
        p(f'v_add_u32 {v(aX+e)}, s59, {v(t2)}')
    p(f'v_and_b32 {v(t0)}, 1, {v(q16)}')
    p(f'v_lshrrev_b32 {v(t1)}, 1, {v(cc)}')
    p(f'v_lshl_add_u32 {v(t0)}, {v(t0)}, 1, {v(t1)}')
    p(f's_lshl_b32 s59, s75, 2')
    p(f'v_add_u32 {v(t0)}, s59, {v(t0)}')
    p(f'v_lshrrev_b32 {v(t1)}, 1, {v(rr)}')
    p(f'v_lshlrev_b32 {v(t1)}, 2, {v(t1)}')
    p(f'v_xor_b32 {v(t0)}, {v(t0)}, {v(t1)}')
    p(f'v_lshlrev_b32 {v(t0)}, 4, {v(t0)}')
    p(f'v_and_b32 {v(t1)}, 1, {v(cc)}')
    p(f'v_lshl_add_u32 {v(t0)}, {v(t1)}, 3, {v(t0)}')
    p(f'v_lshl_add_u32 {v(t1)}, {v(hh)}, 3, {v(rr)}')
    p(f'v_lshl_add_u32 {v(t0)}, {v(t1)}, 7, {v(t0)}')
    p(f's_lshl_b32 s59, s73, 12')
    p(f'v_add_u32 {v(aWr)}, s59, {v(t0)}')
    p(f'v_add_u32 {v(aWr+1)}, {2*24576}, {v(aWr)}')
    for i in range(48): p(f'v_mov_b32 {v(ACC+i)}, 0')
    def reads(c):
        F = FR[c & 1]; slot = c & 3
        for e in range(2):
            p(f'ds_read_b128 {v(F+4*e,4)}, {v(aX+e)} offset:{c*4096}')
        for e in range(2):
            for part in range(3):
                for n in range(2):
                    off = WB + (slot & 1) * 24576 + part * 8192 + e * 2048 + n * 512
                    p(f'ds_read_b64_tr_b16 {v(F+8+(e*3+part)*4+2*n,2)}, {v(aWr+(slot>>1))} offset:{off}', lsrc=f'W{slot}')
    def mfmas(c):
        F = FR[c & 1]
        for e in range(2):
            X = v(F + 4 * e, 4)
            for part in range(3):
                W = v(F + 8 + (e * 3 + part) * 4, 4)
                A = v(ACC + 16 * part, 16)
                if part < 2: p(f'v_mfma_f32_32x32x16_bf16 {A}, {W}, {X}, {A}')
                else: p(f'v_mfma_f32_32x32x16_bf16 {A}, {X}, {W}, {A}')
    vm.wait('W0', ' lgkmcnt(0)')
    p('s_barrier')
    reads(0)
    for c in range(8):
        if c < 7:
            vm.wait(f'W{c+1}', ' lgkmcnt(0)')
            p('s_barrier')
            if c + 4 < 8: dma_w(c + 4)
            reads(c + 1)
        else:
            p('s_waitcnt lgkmcnt(0)')
            p('s_barrier')
        mfmas(c)
    p(f'v_lshlrev_b32 {v(t0)}, 4, {v(lane)}')
    p(f's_and_b32 s59, s{sW}, 3')
    p(f's_mul_i32 s59, s59, 12288')
    p(f'v_add_u32 {v(t0)}, s59, {v(t0)}')
    p(f's_cmp_ge_u32 s{sW}, 4')
    p('s_cbranch_scc1 qkv_hi')
    for i in range(12):
        p(f'ds_write_b128 {v(t0)}, {v(ACC+4*i,4)} offset:{i*1024}')
    p('s_waitcnt lgkmcnt(0)')
    p('s_barrier')
    p('s_branch qkv_done')
    p.label('qkv_hi')
    p('s_barrier')
    TMP = FR[0]
    for half in range(2):
        for i in range(6):
            p(f'ds_read_b128 {v(TMP+4*i,4)}, {v(t0)} offset:{(half*6+i)*1024}')
        p('s_waitcnt lgkmcnt(0)')
        for i in range(12):
            p(f'v_pk_add_f32 {v(ACC+24*half+2*i,2)}, {v(ACC+24*half+2*i,2)}, {v(TMP+2*i,2)}')
    AP = R.alloc(8, 4)
    vm.wait('phi')
    for i in range(4):
        p(f'v_lshl_or_b32 {v(WP+i)}, {v(WP8+2*i+1)}, 16, {v(WP8+2*i)}')
    p(f'v_cmp_eq_u32 vcc, 0, {v(hm)}')
    for i in range(4):
        p(f'v_cndmask_b32 {v(AP+i)}, 0, {v(WP+i)}, vcc')
        p(f'v_cndmask_b32 {v(AP+4+i)}, {v(WP+i)}, 0, vcc') if False else None
    p(f'v_cmp_ne_u32 vcc, 0, {v(hm)}')
    for i in range(4):
        p(f'v_cndmask_b32 {v(AP+4+i)}, 0, {v(WP+i)}, vcc')
    B8 = R.alloc(8, 4); PP = R.alloc(16, 4); E = FR[0]; T8 = R.alloc(8, 2); PH = FR[1]
    PHK = FR[1] + 16
    for which, out in ((0, PH), (1, PHK)):
        for i in range(8):
            p(f'v_cvt_pk_bf16_f32 {v(B8+i)}, {v(ACC+16*which+2*i)}, {v(ACC+16*which+2*i+1)}')
        p(f'v_mfma_f32_32x32x16_bf16 {v(PP,16)}, {v(AP,4)}, {v(B8,4)}, 0')
        p(f'v_mfma_f32_32x32x16_bf16 {v(PP,16)}, {v(AP+4,4)}, {v(B8+4,4)}, {v(PP,16)}')
        softmax_pm(p, PP, E, T8, out, sL2E)
    p(f's_lshl_b32 s59, s{sT}, 3')
    p(f's_add_u32 s59, s59, s{sH}')
    p(f's_lshl_b32 s59, s59, 2')
    p(f's_and_b32 s63, s{sW}, 3')
    p(f's_add_u32 s59, s59, s63')
    p(f's_lshl_b32 s59, s59, 12')
    p(f's_add_u32 s59, s59, {PQ_OFF}')
    p(f'v_lshlrev_b32 {v(t1)}, 4, {v(lane)}')
    for i in range(4):
        vm.issue(f'buffer_store_dwordx4 {v(PH+4*i,4)}, {v(t1)}, s[{SWS}:{SWS+3}], s59 offen offset:{i*1024}', 'pq')
    tk = t0
    p(f'v_and_b32 {v(tk)}, 31, {v(lane)}')
    def maskt(dst, t, tmp):
        p(f'v_bfe_u32 {v(dst)}, {v(t)}, 2, 1')
        p(f'v_and_b32 {v(tmp)}, 1, {v(t)}')
        p(f'v_lshl_or_b32 {v(dst)}, {v(tmp)}, 1, {v(dst)}')
        p(f'v_bfe_u32 {v(tmp)}, {v(t)}, 1, 1')
        p(f'v_lshl_or_b32 {v(dst)}, {v(tmp)}, 2, {v(dst)}')
    maskt(t1, tk, t2)
    p(f's_lshl_b32 s63, s63, 12')
    p(f's_add_u32 s63, s63, 65536')
    p(f'v_lshlrev_b32 {v(t3)}, 7, {v(tk)}')
    p(f'v_add_u32 {v(t3)}, s63, {v(t3)}')
    for i in range(4):
        p(f'v_lshl_add_u32 {v(t2)}, {v(hh)}, 2, {i}')
        p(f'v_xor_b32 {v(t2)}, {v(t2)}, {v(t1)}')
        p(f'v_lshl_add_u32 {v(t2)}, {v(t2)}, 4, {v(t3)}')
        p(f'ds_write_b128 {v(t2)}, {v(PHK+4*i,4)}')
    VA = E
    for i in range(8):
        p(f'v_cvt_pk_bf16_f32 {v(VA+i)}, {v(ACC+32+2*i)}, {v(ACC+32+2*i+1)}')
    p(f'v_bfe_u32 {v(t2)}, {v(lane)}, 4, 1')
    p(f'v_mov_b32 {v(t3)}, 0x3f803f80')
    p(f'v_cmp_eq_u32 vcc, 0, {v(t2)}')
    for i in range(8):
        p(f'v_cndmask_b32 {v(VA+8+i)}, {v(t3)}, {v(VA+i)}, vcc')
        p(f'v_cndmask_b32 {v(VA+16+i)}, {v(VA+i)}, {v(t3)}, vcc')
    KB = ACC
    p(f'v_lshl_add_u32 {v(tk)}, {v(hh)}, 2, {v(rr)}')
    maskt(t1, tk, t2)
    p(f'v_and_b32 {v(t2)}, 1, {v(q16)}')
    p(f'v_lshrrev_b32 {v(t3)}, 1, {v(cc)}')
    p(f'v_lshl_add_u32 {v(t2)}, {v(t2)}, 1, {v(t3)}')
    p(f'v_xor_b32 {v(t2)}, {v(t2)}, {v(t1)}')
    p(f'v_xor_b32 {v(t1)}, 4, {v(t2)}')
    p(f'v_lshlrev_b32 {v(tk)}, 7, {v(tk)}')
    p(f'v_and_b32 {v(t3)}, 1, {v(cc)}')
    p(f'v_lshl_add_u32 {v(tk)}, {v(t3)}, 3, {v(tk)}')
    p(f'v_add_u32 {v(tk)}, s63, {v(tk)}')
    p(f'v_lshl_add_u32 {v(t2)}, {v(t2)}, 4, {v(tk)}')
    p(f'v_lshl_add_u32 {v(t1)}, {v(t1)}, 4, {v(tk)}')
    p('s_waitcnt lgkmcnt(0)')
    for hp_ in range(2):
        for tg in range(2):
            for n in range(2):
                p(f'ds_read_b64_tr_b16 {v(KB+(hp_*2+tg)*4+2*n,2)}, {v(t2 if hp_==0 else t1)} offset:{tg*2048+n*1024}')
    p('s_waitcnt lgkmcnt(0)')
    D0, D1 = PP, ACC + 16
    for hp_, Dd in ((0, D0), (1, D1)):
        for tg in range(2):
            C = '0' if tg == 0 else v(Dd, 16)
            p(f'v_mfma_f32_32x32x16_bf16 {v(Dd,16)}, {v(VA+8+8*hp_+4*tg,4)}, {v(KB+(hp_*2+tg)*4,4)}, {C}')
    p(f'v_and_b32 {v(t0)}, 31, {v(lane)}')
    p(f'v_lshlrev_b32 {v(t0)}, 2, {v(t0)}')
    p(f'v_lshl_add_u32 {v(t1)}, {v(hh)}, 9, {v(t0)}')
    p(f's_mul_i32 s59, s60, {2*17*128}')
    for hp_, Dd in ((0, D0), (1, D1)):
        for r in range(8):
            dd = 8 * (r >> 2) + (r & 3)
            vm.issue(f'buffer_atomic_add_f32 {v(Dd+8*hp_+r)}, {v(t1)}, s[{SKV}:{SKV+3}], s59 offen offset:{hp_*17*128 + dd*128}', 'at')
    p('s_mov_b32 exec_hi, 0')
    for hp_, Dd in ((0, D0), (1, D1)):
        if hp_: p('s_add_u32 s59, s59, 2176')
        vm.issue(f'buffer_atomic_add_f32 {v(Dd+8*(1-hp_))}, {v(t0)}, s[{SKV}:{SKV+3}], s59 offen offset:{16*128}', 'at')
    p.label('qkv_done')
    p('s_endpgm')
    return dict(name='qkv_kernel', vgpr=R.hi, sgpr=80, grid=256, block=512, lds=163840)

def gelu4(p, U, T, sC0, sC1):
    for i in range(4):
        p(f'v_mul_f32 {v(T+i)}, {v(U+i)}, {v(U+i)}')
    for i in range(4):
        p(f'v_fma_f32 {v(T+i)}, {v(T+i)}, s{sC1}, {v(sC0)}')
    for i in range(4):
        p(f'v_mul_f32 {v(T+i)}, {v(T+i)}, {v(U+i)}')
    for i in range(4):
        p(f'v_exp_f32 {v(T+i)}, {v(T+i)}')
    for i in range(4):
        p(f'v_add_f32 {v(T+i)}, 1.0, {v(T+i)}')
    for i in range(4):
        p(f'v_rcp_f32 {v(T+i)}, {v(T+i)}')
    for i in range(4):
        p(f'v_mul_f32 {v(U+i)}, {v(U+i)}, {v(T+i)}')

def u_phase(p, R, vm, lane, sW, SW1, SHF, SB1, SUF, P=5, LB=0):
    sDJ, sFJ = 31, 3
    t0 = R.alloc(); t1 = R.alloc(); t2 = R.alloc(); t3 = R.alloc()
    g = R.alloc(); rr = R.alloc(); cc = R.alloc()
    p(f'v_lshrrev_b32 {v(g)}, 4, {v(lane)}')
    p(f'v_bfe_u32 {v(rr)}, {v(lane)}, 2, 2')
    p(f'v_and_b32 {v(cc)}, 3, {v(lane)}')
    BI = R.alloc(2, 2)
    p(f's_lshl_b32 s56, s{sFJ}, 7')
    p(f's_lshl_b32 s57, s{sW}, 5')
    p(f's_add_u32 s57, s57, s56')
    p(f'v_lshlrev_b32 {v(t0)}, 3, {v(g)}')
    vm.issue(f'buffer_load_dwordx2 {v(BI,2)}, {v(t0)}, s[{SB1}:{SB1+3}], s57 offen', 'b1')
    vD = R.alloc(2)
    p(f'v_lshrrev_b32 {v(t0)}, 3, {v(lane)}')
    p(f'v_mul_u32_u24 {v(t0)}, 2752, {v(t0)}')
    p(f'v_add_u32 {v(t0)}, s56, {v(t0)}')
    p(f'v_and_b32 {v(t1)}, 1, {v(g)}')
    p(f'v_lshlrev_b32 {v(t1)}, 1, {v(t1)}')
    p(f'v_and_b32 {v(t2)}, 7, {v(lane)}')
    p(f'v_xor_b32 {v(t1)}, {v(t1)}, {v(t2)}')
    p(f'v_lshl_add_u32 {v(vD)}, {v(t1)}, 4, {v(t0)}')
    p(f'v_xor_b32 {v(t1)}, 4, {v(t1)}')
    p(f'v_lshl_add_u32 {v(vD+1)}, {v(t1)}, 4, {v(t0)}')
    p(f'v_add_u32 {v(vD+1)}, {8*2752}, {v(vD+1)}')
    vH = R.alloc()
    p(f's_mul_i32 s57, s{sDJ}, 3072')
    p(f'v_lshlrev_b32 {v(vH)}, 4, {v(lane)}')
    p(f'v_add_u32 {v(vH)}, s57, {v(vH)}')
    p(f's_mul_i32 s58, s{sW}, {16*32*2752}')
    p(f's_lshl_b32 s59, s{sW}, 19')
    p(f's_mul_i32 s60, s{sW}, {P*4096}')
    if LB: p(f's_add_u32 s60, s60, {LB}')
    aT = R.alloc(4)
    p(f'v_lshrrev_b32 {v(t0)}, 1, {v(rr)}')
    p(f'v_and_b32 {v(t1)}, 1, {v(g)}')
    p(f'v_lshl_or_b32 {v(t0)}, {v(t1)}, 1, {v(t0)}')
    p(f'v_lshl_add_u32 {v(t1)}, {v(g)}, 3, {v(rr)}')
    p(f'v_lshlrev_b32 {v(t1)}, 7, {v(t1)}')
    p(f'v_lshl_add_u32 {v(t1)}, {v(cc)}, 3, {v(t1)}')
    p(f'v_add_u32 {v(t1)}, s60, {v(t1)}')
    for fb in range(4):
        p(f'v_xor_b32 {v(t2)}, {fb}, {v(t0)}')
        p(f'v_lshl_add_u32 {v(aT+fb)}, {v(t2)}, 5, {v(t1)}')
    ACC = R.alloc(48, 4)
    NF = P + 1
    FH = [R.alloc(12, 4) for _ in range(NF)]
    TT = [R.alloc(16, 4) for _ in range(2)]
    for i in range(48): p(f'v_mov_b32 {v(ACC+i)}, 0')
    NC = 16
    def issue(c):
        slot = c % P
        for j in range(4):
            p(f's_add_u32 m0, s60, {slot*4096 + j*1024}')
            p(f's_add_u32 s61, s58, {(c*32 + (j>>1)*16)*2752}')
            vm.issue(f'buffer_load_dwordx4 {v(vD+(j&1))}, s[{SW1}:{SW1+3}], s61 offen lds', f'c{c}', ldst=f'U{slot}')
        p(f's_add_u32 s61, s59, {c*32768}')
        for db in range(3):
            vm.issue(f'buffer_load_dwordx4 {v(FH[c%NF]+4*db,4)}, {v(vH)}, s[{SHF}:{SHF+3}], s61 offen offset:{db*1024}', f'c{c}')
    def reads(c):
        slot = c % P
        for fb in range(4):
            for n in range(2):
                p(f'ds_read_b64_tr_b16 {v(TT[c&1]+4*fb+2*n,2)}, {v(aT+fb)} offset:{slot*4096+n*512}', lsrc=f'U{slot}')
    def mfmas(c):
        for fb in range(4):
            for db in range(3):
                A = v(ACC + (fb * 3 + db) * 4, 4)
                p(f'v_mfma_f32_16x16x32_bf16 {A}, {v(TT[c&1]+4*fb,4)}, {v(FH[c%NF]+4*db,4)}, {A}')
    for c in range(P): issue(c)
    vm.wait('c0')
    reads(0)
    for c in range(NC):
        p('s_waitcnt lgkmcnt(0)')
        if c + P < NC: issue(c + P)
        if c + 1 < NC:
            vm.wait(f'c{c+1}')
            reads(c + 1)
        mfmas(c)
    p(f'v_lshlrev_b32 {v(t0)}, 4, {v(lane)}')
    p(f'v_add_u32 {v(t1)}, s60, {v(t0)}')
    for i in range(12):
        p(f'ds_write_b128 {v(t1)}, {v(ACC+4*i,4)} offset:{i*1024}')
    p('s_waitcnt lgkmcnt(0)')
    p('s_barrier')
    p(f's_mul_i32 s61, s{sW}, 3072')
    if LB: p(f's_add_u32 s61, s61, {LB}')
    p(f'v_add_u32 {v(t1)}, s61, {v(t0)}')
    for sw in range(4):
        for db in range(3):
            p(f'ds_read_b128 {v(ACC+(sw*3+db)*4,4)}, {v(t1)} offset:{sw*P*4096+db*1024}')
    c0 = -2.0 * LOG2E * 0.7978845608028654
    vC0 = R.alloc()
    p(f'v_mov_b32 {v(vC0)}, {f2u(c0):#x}')
    p(f's_mov_b32 s62, {f2u(c0*0.044715):#x}')
    BF = R.alloc(4, 2)
    p(f'v_lshlrev_b32 {v(BF)}, 16, {v(BI)}')
    p(f'v_and_b32 {v(BF+1)}, 0xffff0000, {v(BI)}')
    p(f'v_lshlrev_b32 {v(BF+2)}, 16, {v(BI+1)}')
    p(f'v_and_b32 {v(BF+3)}, 0xffff0000, {v(BI+1)}')
    p(f's_lshl_b32 s61, s{sFJ}, 2')
    p(f's_add_u32 s61, s61, s{sW}')
    p(f's_lshl_b32 s61, s61, 14')
    p(f's_mul_i32 s63, s{sDJ}, 48')
    p(f'v_and_b32 {v(t0)}, 15, {v(lane)}')
    p(f'v_add_u32 {v(t0)}, s63, {v(t0)}')
    p(f'v_and_b32 {v(t1)}, 1, {v(g)}')
    p(f'v_lshlrev_b32 {v(t1)}, 9, {v(t1)}')
    p(f'v_lshrrev_b32 {v(t2)}, 1, {v(g)}')
    p(f'v_lshl_add_u32 {v(t1)}, {v(t2)}, 3, {v(t1)}')
    p('s_waitcnt lgkmcnt(0)')
    TG = TT[0]
    for db in range(3):
        U = ACC + db * 4
        for h2 in range(2):
            p(f'v_pk_add_f32 {v(U+2*h2,2)}, {v(U+2*h2,2)}, {v(ACC+(3+db)*4+2*h2,2)}')
            p(f'v_pk_add_f32 {v(ACC+(6+db)*4+2*h2,2)}, {v(ACC+(6+db)*4+2*h2,2)}, {v(ACC+(9+db)*4+2*h2,2)}')
            p(f'v_pk_add_f32 {v(U+2*h2,2)}, {v(U+2*h2,2)}, {v(BF+2*h2,2)}')
            p(f'v_pk_add_f32 {v(U+2*h2,2)}, {v(U+2*h2,2)}, {v(ACC+(6+db)*4+2*h2,2)}')
        gelu4(p, U, TG, vC0, 62)
        p(f'v_cvt_pk_bf16_f32 {v(TG+4+2*db)}, {v(U)}, {v(U+1)}')
        p(f'v_cvt_pk_bf16_f32 {v(TG+5+2*db)}, {v(U+2)}, {v(U+3)}')
        p(f'v_add_u32 {v(t2)}, {16*db}, {v(t0)}')
        p(f'v_lshrrev_b32 {v(t3)}, 5, {v(t2)}')
        p(f'v_cmp_gt_u32 vcc, 512, {v(t2)}')
        p(f'v_and_b32 {v(t2)}, 31, {v(t2)}')
        p(f'v_lshl_add_u32 {v(t2)}, {v(t2)}, 4, {v(t1)}')
        p(f'v_lshl_add_u32 {v(t2)}, {v(t3)}, 10, {v(t2)}')
        p(f'v_cndmask_b32 {v(t2)}, -1, {v(t2)}, vcc') if False else None
        p(f'v_mov_b32 {v(t3)}, 0x7fffffff')
        p(f'v_cndmask_b32 {v(t2)}, {v(t3)}, {v(t2)}, vcc')
        vm.issue(f'buffer_store_dwordx2 {v(TG+4+2*db,2)}, {v(t2)}, s[{SUF}:{SUF+3}], s61 offen', 'ust')

def o_phase(p, R, vm, lane, sW, sT, sH, SWS, SKV, PH):
    t0 = R.alloc(); t1 = R.alloc(); t2 = R.alloc()
    KVF = R.alloc(32, 4); ZF = R.alloc(32, 4)
    AK = R.alloc(16, 4); AZ = R.alloc(16, 4)
    for i in range(32):
        p(f'v_mov_b32 {v(KVF+i)}, 0')
        p(f'v_mov_b32 {v(ZF+i)}, 0')
    p(f's_and_b32 s59, s{sW}, 1')
    p(f's_lshl_b32 s60, s{sH}, 1')
    p(f's_add_u32 s60, s60, s59')
    p(f's_mul_i32 s59, s60, {2*17*128}')
    p(f'v_bfe_u32 {v(t0)}, {v(lane)}, 4, 1')
    p(f'v_lshrrev_b32 {v(t1)}, 5, {v(lane)}')
    p(f'v_cmp_eq_u32 vcc, {v(t0)}, {v(t1)}')
    p(f'v_mul_u32_u24 {v(t0)}, {17*128}, {v(t0)}')
    p(f'v_and_b32 {v(t1)}, 15, {v(lane)}')
    p(f'v_lshl_add_u32 {v(t1)}, {v(t1)}, 7, {v(t0)}')
    p('s_and_saveexec_b64 s[62:63], vcc')
    for i in range(8):
        vm.issue(f'buffer_load_dwordx4 {v(KVF+4*i,4)}, {v(t1)}, s[{SKV}:{SKV+3}], s59 offen offset:{i*16}', 'kv')
    for i in range(8):
        vm.issue(f'buffer_load_dwordx4 {v(ZF+4*i,4)}, {v(t0)}, s[{SKV}:{SKV+3}], s59 offen offset:{16*128+i*16}', 'kv')
    p('s_mov_b64 exec, s[62:63]')
    vm.wait('kv')
    for i in range(16):
        p(f'v_cvt_pk_bf16_f32 {v(AK+i)}, {v(KVF+2*i)}, {v(KVF+2*i+1)}')
        p(f'v_cvt_pk_bf16_f32 {v(AZ+i)}, {v(ZF+2*i)}, {v(ZF+2*i+1)}')
    NUM, DEN = KVF, ZF
    for t in range(4):
        p(f'v_mfma_f32_32x32x16_bf16 {v(NUM,16)}, {v(AK+4*t,4)}, {v(PH+4*t,4)}, ' + ('0' if t == 0 else v(NUM, 16)))
    for t in range(4):
        p(f'v_mfma_f32_32x32x16_bf16 {v(DEN,16)}, {v(AZ+4*t,4)}, {v(PH+4*t,4)}, ' + ('0' if t == 0 else v(DEN, 16)))
    RC = KVF + 16
    for h in range(2):
        p(f'v_add_f32 {v(RC+2*h)}, {f2u(1e-6):#x}, {v(DEN+8*h)}')
        p(f'v_rcp_f32 {v(RC+2*h)}, {v(RC+2*h)}')
    OO = AK
    for h in range(2):
        for i in range(4):
            p(f'v_pk_mul_f32 {v(NUM+8*h+2*i,2)}, {v(NUM+8*h+2*i,2)}, {v(RC+2*h,2)} op_sel_hi:[1,0]')
            p(f'v_cvt_pk_bf16_f32 {v(OO+4*h+i)}, {v(NUM+8*h+2*i)}, {v(NUM+8*h+2*i+1)}')
    p(f's_lshl_b32 s59, s60, 17')
    p(f's_bfe_u32 s61, s{sW}, 0x10001')
    p(f's_lshl_b32 s62, s{sT}, 1')
    p(f's_add_u32 s61, s61, s62')
    p(f's_lshl_b32 s61, s61, 10')
    p(f's_add_u32 s59, s59, s61')
    p(f's_add_u32 s59, s59, {OF_OFF}')
    p(f's_add_u32 s61, s59, 65536')
    p(f'v_lshlrev_b32 {v(t0)}, 4, {v(lane)}')
    vm.issue(f'buffer_store_dwordx4 {v(OO,4)}, {v(t0)}, s[{SWS}:{SWS+3}], s59 offen', 'ost')
    vm.issue(f'buffer_store_dwordx4 {v(OO+4,4)}, {v(t0)}, s[{SWS}:{SWS+3}], s61 offen', 'ost')

def k_uo(p):
    R = Regs('v', 1, 256)
    p.label('uo_kernel')
    p('s_cmp_ge_u32 s2, 256')
    p('s_cbranch_scc1 uo_done')
    load_args(p)
    sW = 33
    lane = R.alloc(); t0 = R.alloc()
    p(f'v_and_b32 {v(lane)}, 63, v0')
    p(f'v_lshrrev_b32 {v(t0)}, 6, v0')
    p(f'v_readfirstlane_b32 s{sW}, {v(t0)}')
    p('s_waitcnt lgkmcnt(0)')
    SW1, SHF, SB1, SUF, SWS, SKV = 36, 40, 44, 48, 52, 64
    srd(p, SW1, P_W1, S_ * F_ * 2)
    srd(p, SHF, P_WS, (2 << 20) + 4096, HF_OFF)
    srd(p, SB1, P_B1, F_ * 2)
    srd(p, SUF, P_WS, UF_BYTES, UF_OFF)
    srd(p, SWS, P_WS, 32 << 20)
    srd(p, SKV, P_WS, KV_BYTES, KV_OFF)
    p(f's_cmp_ge_u32 s{sW}, 4')
    p('s_cbranch_scc1 uo_hi')
    p("""
    s_and_b32 s28, s2, 7
    s_lshr_b32 s29, s2, 3
    s_cmp_ge_u32 s29, 31
    s_cbranch_scc1 uo_done
    s_mul_i32 s28, s28, 31
    s_add_u32 s28, s28, s29
    s_cmp_ge_u32 s28, 242
    s_cbranch_scc1 uo_done
    s_mul_i32 s3, s28, 373
    s_lshr_b32 s3, s3, 12
    s_mul_i32 s29, s3, 11
    s_sub_u32 s31, s28, s29
    """)
    m = R.mark()
    u_phase(p, R, VM(p), lane, sW, SW1, SHF, SB1, SUF)
    p('s_branch uo_done')
    p.label('uo_hi')
    R.release(m)
    vm = VM(p)
    sT, sH = 31, 3
    tile_map(p, sT, sH)
    PH = R.alloc(16, 4)
    p(f's_lshl_b32 s59, s{sT}, 3')
    p(f's_add_u32 s59, s59, s{sH}')
    p(f's_lshl_b32 s59, s59, 2')
    p(f's_and_b32 s63, s{sW}, 3')
    p(f's_add_u32 s59, s59, s63')
    p(f's_lshl_b32 s59, s59, 12')
    p(f's_add_u32 s59, s59, {PQ_OFF}')
    p(f'v_lshlrev_b32 {v(t0)}, 4, {v(lane)}')
    for i in range(4):
        vm.issue(f'buffer_load_dwordx4 {v(PH+4*i,4)}, {v(t0)}, s[{SWS}:{SWS+3}], s59 offen offset:{i*1024}', 'pq')
    o_phase(p, R, vm, lane, sW, sT, sH, SWS, SKV, PH)
    p.label('uo_done')
    p('s_endpgm')
    return dict(name='uo_kernel', vgpr=R.hi, sgpr=80, grid=256, block=512, lds=5 * 4096 * 4)

def k_final(p, P=5):
    R = Regs('v', 1, 256)
    vm = VM(p)
    p.label('final_kernel')
    p('s_cmp_ge_u32 s2, 256')
    p('s_cbranch_scc1 final_done')
    load_args(p)
    sT, sD, sW = 31, 3, 33
    tile_map(p, sT, sD)
    lane = R.alloc(); t0 = R.alloc(); t1 = R.alloc(); t2 = R.alloc(); t3 = R.alloc()
    p(f'v_and_b32 {v(lane)}, 63, v0')
    p(f'v_lshrrev_b32 {v(t0)}, 6, v0')
    p(f'v_readfirstlane_b32 s{sW}, {v(t0)}')
    p('s_waitcnt lgkmcnt(0)')
    SX, SWO, SW2, SB2, SOUT, SUF, SOF = 36, 40, 44, 48, 52, 64, 68
    srd(p, SX, P_X, S_ * D_ * 2)
    srd(p, SWO, P_WO, D_ * D_ * 2)
    srd(p, SW2, P_W2, F_ * S_ * 2)
    srd(p, SB2, P_B2, S_ * 2)
    srd(p, SOUT, P_OUT, S_ * D_ * 2)
    srd(p, SUF, P_WS, UF_BYTES, UF_OFF)
    srd(p, SOF, P_WS, 2 << 20, OF_OFF)
    hh = R.alloc(); q16 = R.alloc(); rr = R.alloc(); cc = R.alloc()
    p(f'v_lshrrev_b32 {v(hh)}, 5, {v(lane)}')
    p(f'v_lshrrev_b32 {v(q16)}, 4, {v(lane)}')
    p(f'v_bfe_u32 {v(rr)}, {v(lane)}, 2, 2')
    p(f'v_and_b32 {v(cc)}, 3, {v(lane)}')
    XR = R.alloc(8, 2); B2 = R.alloc(); vO = R.alloc()
    p(f's_and_b32 s56, s{sW}, 1')
    p(f's_lshl_b32 s56, s56, 5')
    p(f's_lshl_b32 s57, s{sT}, 6')
    p(f's_add_u32 s56, s56, s57')
    p(f'v_and_b32 {v(t0)}, 31, {v(lane)}')
    p(f'v_add_u32 {v(t0)}, s56, {v(t0)}')
    p(f's_lshr_b32 s56, s{sW}, 1')
    p(f's_lshl_b32 s56, s56, 6')
    p(f's_lshl_b32 s57, s{sD}, 7')
    p(f's_add_u32 s56, s56, s57')
    p(f'v_lshlrev_b32 {v(vO)}, 10, {v(t0)}')
    p(f'v_lshl_add_u32 {v(vO)}, {v(hh)}, 3, {v(vO)}')
    p(f'v_add_u32 {v(vO)}, s56, {v(vO)}')
    for q in range(4):
        vm.issue(f'buffer_load_dwordx2 {v(XR+2*q,2)}, {v(vO)}, s[{SX}:{SX+3}], 0 offen offset:{q*16}', 'x')
    p(f'v_lshlrev_b32 {v(t0)}, 1, {v(t0)}')
    vm.issue(f'buffer_load_ushort {v(B2)}, {v(t0)}, s[{SB2}:{SB2+3}], 0 offen', 'x')
    vD1 = R.alloc(); vD2 = R.alloc(); vF = R.alloc()
    p(f'v_and_b32 {v(t0)}, 1, {v(q16)}')
    p(f'v_lshlrev_b32 {v(t0)}, 2, {v(t0)}')
    p(f'v_and_b32 {v(t1)}, 7, {v(lane)}')
    p(f'v_xor_b32 {v(t0)}, {v(t0)}, {v(t1)}')
    p(f'v_lshlrev_b32 {v(t0)}, 4, {v(t0)}')
    p(f'v_lshrrev_b32 {v(t1)}, 3, {v(lane)}')
    p(f'v_lshl_add_u32 {v(vD1)}, {v(t1)}, 10, {v(t0)}')
    p(f'v_add_u32 {v(vD1)}, s57, {v(vD1)}')
    p(f'v_lshl_add_u32 {v(vD2)}, {v(t1)}, 12, {v(t0)}')
    p(f's_lshl_b32 s57, s{sT}, 7')
    p(f'v_add_u32 {v(vD2)}, s57, {v(vD2)}')
    p(f'v_lshlrev_b32 {v(vF)}, 4, {v(lane)}')
    p(f's_mul_i32 s60, s{sW}, {P*4096}')
    p(f's_lshl_b32 s72, s{sW}, 15')
    p(f's_lshl_b32 s73, s{sW}, 17')
    p(f's_lshl_b32 s74, s{sW}, 17')
    p(f's_lshl_b32 s57, s{sT}, 11')
    p(f's_add_u32 s74, s74, s57')
    p(f's_lshl_b32 s75, s{sW}, 15')
    p(f's_lshl_b32 s57, s{sD}, 11')
    p(f's_add_u32 s75, s75, s57')
    aT = R.alloc(2)
    p(f'v_and_b32 {v(t0)}, 1, {v(q16)}')
    p(f'v_lshlrev_b32 {v(t0)}, 1, {v(t0)}')
    p(f'v_lshrrev_b32 {v(t1)}, 1, {v(rr)}')
    p(f'v_lshl_add_u32 {v(t0)}, {v(t1)}, 2, {v(t0)}')
    p(f'v_lshl_add_u32 {v(t1)}, {v(hh)}, 2, {v(rr)}')
    p(f'v_lshlrev_b32 {v(t1)}, 7, {v(t1)}')
    p(f'v_lshl_add_u32 {v(t1)}, {v(cc)}, 3, {v(t1)}')
    p(f'v_add_u32 {v(t1)}, s60, {v(t1)}')
    p(f'v_lshl_add_u32 {v(aT)}, {v(t0)}, 4, {v(t1)}')
    p(f'v_xor_b32 {v(t0)}, 4, {v(t0)}')
    p(f'v_lshl_add_u32 {v(aT+1)}, {v(t0)}, 4, {v(t1)}')
    ACC = R.alloc(64, 4)
    NF = P + 1
    FF = [R.alloc(16, 4) for _ in range(NF)]
    TT = [R.alloc(16, 4) for _ in range(2)]
    for i in range(64): p(f'v_mov_b32 {v(ACC+i)}, 0')
    NC = 15
    def issue(i):
        slot = i % P
        for j in range(4):
            p(f's_add_u32 m0, s60, {slot*4096 + j*1024}')
            if i < 4:
                p(f's_add_u32 s61, s72, {(i*128 + j*8)*1024}')
                vm.issue(f'buffer_load_dwordx4 {v(vD1)}, s[{SWO}:{SWO+3}], s61 offen lds', f'c{i}', ldst=f'R{slot}')
            else:
                p(f's_add_u32 s61, s73, {((i-4)*128 + j*8)*4096}')
                vm.issue(f'buffer_load_dwordx4 {v(vD2)}, s[{SW2}:{SW2+3}], s61 offen lds', f'c{i}', ldst=f'R{slot}')
        for e in range(2):
            if i < 4:
                p(f's_add_u32 s61, s74, {(i*8 + e)*65536}')
                sr = SOF
            else:
                p(f's_add_u32 s61, s75, {((i-4)*8 + e)*16384}')
                sr = SUF
            for b in range(2):
                vm.issue(f'buffer_load_dwordx4 {v(FF[i%NF]+(e*2+b)*4,4)}, {v(vF)}, s[{sr}:{sr+3}], s61 offen offset:{b*1024}', f'c{i}')
    def reads(i):
        slot = i % P
        for e in range(2):
            for b in range(2):
                for n in range(2):
                    p(f'ds_read_b64_tr_b16 {v(TT[i&1]+(e*2+b)*4+2*n,2)}, {v(aT+b)} offset:{slot*4096+e*2048+n*1024}', lsrc=f'R{slot}')
    def mfmas(i):
        for e in range(2):
            for db in range(2):
                for sb in range(2):
                    A = v(ACC + (db * 2 + sb) * 16, 16)
                    if i < 4: a_, b_ = v(TT[i&1] + (e*2+db)*4, 4), v(FF[i%NF] + (e*2+sb)*4, 4)
                    else:     a_, b_ = v(FF[i%NF] + (e*2+db)*4, 4), v(TT[i&1] + (e*2+sb)*4, 4)
                    p(f'v_mfma_f32_32x32x16_bf16 {A}, {a_}, {b_}, {A}')
    for i in range(P): issue(i)
    vm.wait('c0')
    reads(0)
    for i in range(NC):
        p('s_waitcnt lgkmcnt(0)')
        if i + P < NC: issue(i + P)
        if i + 1 < NC:
            vm.wait(f'c{i+1}')
            reads(i + 1)
        mfmas(i)
    p(f'v_add_u32 {v(t1)}, s60, {v(vF)}')
    for i in range(16):
        p(f'ds_write_b128 {v(t1)}, {v(ACC+4*i,4)} offset:{i*1024}')
    p('s_waitcnt lgkmcnt(0)')
    p('s_barrier')
    p(f's_lshl_b32 s61, s{sW}, 12')
    p(f'v_add_u32 {v(t1)}, s61, {v(vF)}')
    for sw in range(4):
        if sw == 3: p('s_waitcnt lgkmcnt(4)')
        for q in range(4):
            p(f'ds_read_b128 {v(ACC+(sw*4+q)*4,4)}, {v(t1)} offset:{sw*P*4096+q*1024}')
    XF = FF[0]
    for i in range(8):
        p(f'v_lshlrev_b32 {v(XF+2*i)}, 16, {v(XR+i)}')
        p(f'v_and_b32 {v(XF+2*i+1)}, 0xffff0000, {v(XR+i)}')
    BB = FF[1]
    p(f'v_lshlrev_b32 {v(BB)}, 16, {v(B2)}')
    for i in range(8):
        p(f'v_pk_add_f32 {v(XF+2*i,2)}, {v(XF+2*i,2)}, {v(BB,2)} op_sel_hi:[1,0]')
    p('s_waitcnt lgkmcnt(0)')
    for i in range(8):
        p(f'v_pk_add_f32 {v(ACC+2*i,2)}, {v(ACC+2*i,2)}, {v(ACC+16+2*i,2)}')
        p(f'v_pk_add_f32 {v(ACC+32+2*i,2)}, {v(ACC+32+2*i,2)}, {v(ACC+48+2*i,2)}')
        p(f'v_pk_add_f32 {v(ACC+2*i,2)}, {v(ACC+2*i,2)}, {v(XF+2*i,2)}')
        p(f'v_pk_add_f32 {v(ACC+2*i,2)}, {v(ACC+2*i,2)}, {v(ACC+32+2*i,2)}')
        p(f'v_cvt_pk_bf16_f32 {v(TT[0]+i)}, {v(ACC+2*i)}, {v(ACC+2*i+1)}')
    for q in range(4):
        vm.issue(f'buffer_store_dwordx2 {v(TT[0]+2*q,2)}, {v(vO)}, s[{SOUT}:{SOUT+3}], 0 offen offset:{q*16}', 'st')
    p.label('final_done')
    p('s_endpgm')
    return dict(name='final_kernel', vgpr=R.hi, sgpr=80, grid=256, block=256, lds=P * 4096 * 4)

def build(kernels, out):
    hdr = open('cdna_kernels/' + NAME + '.s.ref').read().split('\n')
    hdr = [l for l in hdr if l.startswith(';') and '@launch' not in l and 'Override launch' not in l and 'grid=ceil' not in l]
    text = []
    infos = []
    body = []
    for kf in kernels:
        p = Prog()
        info = kf(p)
        n = p.pad_hazards()
        errs = p.check_waitcnt(info['name'])
        for e in sorted(errs): print('WAITCNT', info['name'], e, file=sys.stderr)
        ninst = sum(1 for i in p.ins if i.is_real())
        print(f"{info['name']}: {ninst} instrs, {n} nop-slots padded, vgpr {info['vgpr']}", file=sys.stderr)
        infos.append(info)
        body.append(f".globl {info['name']}\n.p2align 8\n.type {info['name']},@function\n" + p.text())
    text += hdr
    for i in infos:
        text.append(f"; @launch kernel={i['name']} grid=({i['grid']},1,1) block=({i['block']},1,1) lds={i['lds']}")
    text.append('.amdgcn_target "amdgcn-amd-amdhsa--gfx950"\n.text')
    text += body
    text.append('.section .rodata,"a"')
    for i in infos:
        nv = (i['vgpr'] + 7) // 8 * 8
        text.append(f""".p2align 6
.amdhsa_kernel {i['name']}
  .amdhsa_next_free_vgpr {nv}
  .amdhsa_next_free_sgpr {i['sgpr']}
  .amdhsa_accum_offset {nv}
  .amdhsa_group_segment_fixed_size 0
  .amdhsa_kernarg_size 96
  .amdhsa_user_sgpr_count 2
  .amdhsa_user_sgpr_kernarg_segment_ptr 1
  .amdhsa_system_sgpr_workgroup_id_x 1
.end_amdhsa_kernel""")
    open(out, 'w').write('\n'.join(text) + '\n')

if __name__ == '__main__':
    out = sys.argv[1] if len(sys.argv) > 1 else 'cdna_kernels/' + NAME + '.s'
    build([k_zero, k_qkv, k_uo, k_final], out)
```

```python
import sys, struct
from asmlib import *

NAME = 'parallel_sum__linear_kernel_hedgehog__mixer_token_mlp__prompt'
S_, D_, H_, F_ = 2048, 512, 32, 1376
HF_OFF = 0
UF_OFF = 4 << 20
OF_OFF = 8 << 20
KV_OFF = 12 << 20
PQ_OFF = 16 << 20
KV_BYTES = 32 * 17 * 32 * 4
UF_BYTES = 86 * 16384
LOG2E = 1.4426950408889634
def f2u(x): return struct.unpack('<I', struct.pack('<f', x))[0]

class VM:
    def __init__(self, p): self.p = p; self.q = []
    def issue(self, text, tag, **kw):
        self.p(text, **kw); self.q.append(tag)
    def wait(self, tag, extra=''):
        if tag not in self.q:
            if extra: self.p('s_waitcnt' + extra)
            return
        idx = max(i for i, t in enumerate(self.q) if t == tag)
        n = len(self.q) - 1 - idx
        assert n <= 63
        self.p(f's_waitcnt vmcnt({n}){extra}')
        self.q = self.q[idx + 1:]
    def has(self, tag): return tag in self.q

import os
STAMPS = int(os.environ.get('STAMPS', '0'))
ST_OFF = 24 << 20
class Stamper:
    def __init__(self, p, kidx): self.p = p; self.n = 0; self.k = kidx
    def __call__(self, real=False):
        if not STAMPS: return
        assert self.n < 10
        self.p(f"{'s_memrealtime' if real else 's_memtime'} s[{80+2*self.n}:{81+2*self.n}]")
        self.n += 1
    def flush(self, n=None):
        if not STAMPS: return
        p = self.p
        n = n or self.n
        p('s_waitcnt lgkmcnt(0)')
        srd(p, 76, P_WS, 1 << 20, ST_OFF + (self.k << 20))
        p('s_lshl_b32 s28, s2, 3')
        p('s_add_u32 s28, s28, s33')
        p('s_lshl_b32 s28, s28, 7')
        p('s_mov_b64 exec, 1')
        p('v_mov_b32 v1, 0')
        for i in range(n):
            p(f'v_mov_b32 v2, s{80+2*i}')
            p(f'v_mov_b32 v3, s{81+2*i}')
            p(f'buffer_store_dwordx2 v[2:3], v1, s[76:79], s28 offen offset:{i*8}')
            p('s_nop 1')

def srd(p, d, base_lo, nbytes, add=0):
    if add:
        p(f's_add_u32 s{d}, s{base_lo}, {add:#x}')
        p(f's_addc_u32 s{d+1}, s{base_lo+1}, 0')
    else:
        p(f's_mov_b32 s{d}, s{base_lo}')
        p(f's_mov_b32 s{d+1}, s{base_lo+1}')
    p(f's_mov_b32 s{d+2}, {nbytes:#x}')
    p(f's_mov_b32 s{d+3}, 0x20000')

def load_args(p):
    p('s_load_dwordx16 s[4:19], s[0:1], 0')
    p('s_load_dwordx8 s[20:27], s[0:1], 64')
P_X, P_WQKV, P_WPHI, P_WO, P_BX, P_W1, P_B1, P_W2, P_B2, P_OUT, P_DBG, P_WS = 4, 6, 8, 10, 12, 14, 16, 18, 20, 22, 24, 26

def tile_map(p, s_t, s_h):
    p(f'''
    s_and_b32 s28, s2, 7
    s_lshr_b32 s29, s2, 3
    s_lshr_b32 s{s_t}, s28, 1
    s_lshl_b32 s{s_t}, s{s_t}, 3
    s_and_b32 s30, s29, 7
    s_add_u32 s{s_t}, s{s_t}, s30
    s_and_b32 s{s_h}, s28, 1
    s_lshl_b32 s{s_h}, s{s_h}, 2
    s_lshr_b32 s30, s29, 3
    s_add_u32 s{s_h}, s{s_h}, s30
    ''')

def k_zero(p):
    p.label('zero_kernel')
    p('s_cmp_ge_u32 s2, 17')
    p('s_cbranch_scc1 zero_done')
    load_args(p)
    p('s_waitcnt lgkmcnt(0)')
    srd(p, 32, P_WS, KV_BYTES, KV_OFF)
    p('''
    s_lshl_b32 s3, s2, 12
    v_lshlrev_b32 v1, 4, v0
    v_mov_b32 v4, 0
    v_mov_b32 v5, 0
    v_mov_b32 v6, 0
    v_mov_b32 v7, 0
    buffer_store_dwordx4 v[4:7], v1, s[32:35], s3 offen
    ''')
    p.label('zero_done')
    p('s_endpgm')
    return dict(name='zero_kernel', vgpr=8, sgpr=40, grid=17, block=256, lds=0)

def softmax_pm(p, P, E, T, PH, sL2E):
    mx, mn, a, b = T, T + 1, T + 2, T + 3
    p(f'v_max3_f32 {v(mx)}, {v(P)}, {v(P+1)}, {v(P+2)}')
    p(f'v_min3_f32 {v(mn)}, {v(P)}, {v(P+1)}, {v(P+2)}')
    for i in range(3, 15, 2):
        p(f'v_max3_f32 {v(mx)}, {v(mx)}, {v(P+i)}, {v(P+i+1)}')
        p(f'v_min3_f32 {v(mn)}, {v(mn)}, {v(P+i)}, {v(P+i+1)}')
    p(f'v_max_f32 {v(mx)}, {v(mx)}, {v(P+15)}')
    p(f'v_min_f32 {v(mn)}, {v(mn)}, {v(P+15)}')
    p(f'v_mul_f32 {v(mx)}, s{sL2E}, {v(mx)}')
    p(f'v_mul_f32 {v(mn)}, s{sL2E}, {v(mn)}')
    for i in range(16):
        p(f'v_fma_f32 {v(E+i)}, {v(P+i)}, s{sL2E}, -{v(mx)}')
        p(f'v_fma_f32 {v(E+16+i)}, -{v(P+i)}, s{sL2E}, {v(mn)}')
    for i in range(32):
        p(f'v_exp_f32 {v(E+i)}, {v(E+i)}')
    for h in range(2):
        base = E + 16 * h; t = P + 8 * h
        for i in range(4):
            p(f'v_pk_add_f32 {v(t+2*i,2)}, {v(base+4*i,2)}, {v(base+4*i+2,2)}')
        p(f'v_pk_add_f32 {v(t,2)}, {v(t,2)}, {v(t+2,2)}')
        p(f'v_pk_add_f32 {v(t+4,2)}, {v(t+4,2)}, {v(t+6,2)}')
        p(f'v_pk_add_f32 {v(t,2)}, {v(t,2)}, {v(t+4,2)}')
        p(f'v_add_f32 {v(t)}, {v(t)}, {v(t+1)}')
    p(f'v_rcp_f32 {v(T+4)}, {v(P)}')
    p(f'v_rcp_f32 {v(T+6)}, {v(P+8)}')
    for h in range(2):
        base = E + 16 * h; r = T + 4 + 2 * h
        for i in range(8):
            p(f'v_pk_mul_f32 {v(base+2*i,2)}, {v(base+2*i,2)}, {v(r,2)} op_sel_hi:[1,0]')
        for i in range(8):
            p(f'v_cvt_pk_bf16_f32 {v(PH+8*h+i)}, {v(base+2*i)}, {v(base+2*i+1)}')

def k_qkv(p):
    WB, XB = 0, 98304
    R = Regs('v', 1, 256)
    vm = VM(p)
    p.label('qkv_kernel')
    p('s_cmp_ge_u32 s2, 256')
    p('s_cbranch_scc1 qkv_done')
    load_args(p)
    sT, sH, sW = 31, 3, 33
    tile_map(p, sT, sH)
    lane = R.alloc(); t0 = R.alloc(); t1 = R.alloc(); t2 = R.alloc(); t3 = R.alloc()
    p(f'v_and_b32 {v(lane)}, 63, v0')
    p(f'v_lshrrev_b32 {v(t0)}, 6, v0')
    p(f'v_readfirstlane_b32 s{sW}, {v(t0)}')
    p('s_waitcnt lgkmcnt(0)')
    SX, SWQ, SPH, SWS, SKV = 36, 40, 44, 48, 52
    srd(p, SX, P_X, S_ * D_ * 2)
    srd(p, SWQ, P_WQKV, D_ * 3 * D_ * 2)
    srd(p, SPH, P_WPHI, H_ * 256 * 2)
    srd(p, SWS, P_WS, 32 << 20)
    srd(p, SKV, P_WS, KV_BYTES, KV_OFF)
    sL2E = 34
    p(f's_mov_b32 s{sL2E}, {f2u(LOG2E):#x}')
    XR = R.alloc(32, 4)
    sub = R.alloc(); tl = R.alloc()
    p(f'v_and_b32 {v(sub)}, 7, v0')
    p(f'v_lshrrev_b32 {v(tl)}, 3, v0')
    p(f'v_lshlrev_b32 {v(t0)}, 10, {v(tl)}')
    p(f'v_lshl_add_u32 {v(t0)}, {v(sub)}, 4, {v(t0)}')
    p(f's_lshl_b32 s56, s{sT}, 16')
    for i in range(8):
        vm.issue(f'buffer_load_dwordx4 {v(XR+4*i,4)}, {v(t0)}, s[{SX}:{SX+3}], s56 offen offset:{i*128}', 'x')
    vW = R.alloc()
    p(f'v_bfe_u32 {v(t1)}, v0, 4, 1')
    p(f'v_lshlrev_b32 {v(t1)}, 2, {v(t1)}')
    p(f'v_xor_b32 {v(t1)}, {v(t1)}, {v(sub)}')
    p(f'v_mul_u32_u24 {v(vW)}, 3072, {v(tl)}')
    p(f'v_lshl_add_u32 {v(vW)}, {v(t1)}, 4, {v(vW)}')
    p(f's_lshl_b32 s57, s{sH}, 7')
    p(f'v_add_u32 {v(vW)}, s57, {v(vW)}')
    p(f's_lshl_b32 s58, s{sW}, 10')
    def dma_w(c):
        slot = c & 3
        for part in range(3):
            p(f's_add_u32 m0, s58, {WB + slot*24576 + part*(8192-1024)}')
            p(f's_mov_b32 s59, {c*64*3072}')
            vm.issue(f'buffer_load_dwordx4 {v(vW)}, s[{SWQ}:{SWQ+3}], s59 offen offset:{part*1024} lds', f'W{c}', ldst=f'W{slot}')
    for c in range(4): dma_w(c)
    WP = R.alloc(4, 4)
    hh = R.alloc(); hm = R.alloc()
    p(f'v_lshrrev_b32 {v(hh)}, 5, {v(lane)}')
    p(f'v_bfe_u32 {v(hm)}, {v(lane)}, 2, 1')
    p(f'v_bfe_u32 {v(t1)}, {v(lane)}, 3, 2')
    p(f'v_and_b32 {v(t2)}, 3, {v(lane)}')
    p(f'v_lshl_add_u32 {v(t1)}, {v(t1)}, 2, {v(t2)}')
    p(f'v_lshlrev_b32 {v(t1)}, 1, {v(t1)}')
    p(f'v_lshl_add_u32 {v(t1)}, {v(hh)}, 7, {v(t1)}')
    p(f'v_lshl_add_u32 {v(t1)}, {v(hm)}, 9, {v(t1)}')
    p(f's_and_b32 s59, s{sW}, 1')
    p(f's_lshl_b32 s60, s{sH}, 1')
    p(f's_add_u32 s60, s60, s59')
    p(f's_lshl_b32 s61, s60, 10')
    WP8 = R.alloc(8)
    for i in range(8):
        d = 8 * (i >> 2) + (i & 3)
        vm.issue(f'buffer_load_ushort {v(WP8+i)}, {v(t1)}, s[{SPH}:{SPH+3}], s61 offen offset:{d*32}', 'phi')
    XD = R.alloc(64, 4)
    sm = R.alloc(2, 2); r1 = R.alloc(2, 2); r2 = R.alloc()
    p('s_mov_b32 s62, 0x3f803f80')
    p(f'v_mov_b32 {v(sm)}, 0')
    p(f'v_mov_b32 {v(sm+1)}, 0')
    vm.wait('x')
    for i in range(32):
        p(f'v_dot2c_f32_bf16 {v(sm + (i&1))}, s62, {v(XR+i)}')
    for i in range(32):
        p(f'v_lshlrev_b32 {v(XD+2*i)}, 16, {v(XR+i)}')
        p(f'v_and_b32 {v(XD+2*i+1)}, 0xffff0000, {v(XR+i)}')
    p(f'v_add_f32 {v(sm)}, {v(sm)}, {v(sm+1)}')
    def red8(r):
        p(f'v_add_f32_dpp {v(r)}, {v(r)}, {v(r)} quad_perm:[1,0,3,2] row_mask:0xf bank_mask:0xf')
        p(f'v_add_f32_dpp {v(r)}, {v(r)}, {v(r)} quad_perm:[2,3,0,1] row_mask:0xf bank_mask:0xf')
        p(f'v_add_f32_dpp {v(r)}, {v(r)}, {v(r)} row_half_mirror row_mask:0xf bank_mask:0xf')
    red8(sm)
    p(f'v_mul_f32 {v(sm)}, {f2u(-1.0/512):#x}, {v(sm)}')
    for i in range(32):
        p(f'v_pk_add_f32 {v(XD+2*i,2)}, {v(XD+2*i,2)}, {v(sm,2)} op_sel_hi:[1,0]')
    p(f'v_pk_mul_f32 {v(r1,2)}, {v(XD,2)}, {v(XD,2)}')
    p(f'v_pk_mul_f32 {v(t2,2)}, {v(XD+2,2)}, {v(XD+2,2)}') if t2 % 2 == 0 else None
    acc2 = t2 if t2 % 2 == 0 else None
    assert acc2 is not None
    for i in range(2, 32):
        tgt = r1 if i % 2 == 0 else acc2
        p(f'v_pk_fma_f32 {v(tgt,2)}, {v(XD+2*i,2)}, {v(XD+2*i,2)}, {v(tgt,2)}')
    p(f'v_pk_add_f32 {v(r1,2)}, {v(r1,2)}, {v(acc2,2)}')
    p(f'v_add_f32 {v(r1)}, {v(r1)}, {v(r1+1)}')
    red8(r1)
    p(f'v_mov_b32 {v(t0)}, {f2u(1e-5):#x}')
    p(f'v_mul_f32 {v(t1)}, {f2u(1.0/512):#x}, {v(r1)}')
    p(f'v_add_f32 {v(r1)}, {v(t1)}, {v(t0)}')
    p(f'v_rsq_f32 {v(r1)}, {v(r1)}')
    p(f'v_mul_f32 {v(r2)}, {v(r1)}, {v(r1)}')
    p(f'v_fma_f32 {v(r2)}, {v(r2)}, {v(t1)}, {v(t0)}')
    p(f'v_rsq_f32 {v(r2)}, {v(r2)}')
    for i in range(32):
        p(f'v_pk_mul_f32 {v(XD+2*i,2)}, {v(XD+2*i,2)}, {v(r1,2)} op_sel_hi:[1,0]')
    for i in range(32):
        p(f'v_cvt_pk_bf16_f32 {v(XR+i)}, {v(XD+2*i)}, {v(XD+2*i+1)}')
    p(f'v_and_b32 {v(t0)}, 31, {v(tl)}')
    p(f'v_xor_b32 {v(t0)}, {v(t0)}, {v(sub)}')
    p(f'v_lshlrev_b32 {v(t0)}, 4, {v(t0)}')
    p(f'v_lshl_add_u32 {v(t0)}, {v(sub)}, 9, {v(t0)}')
    p(f'v_lshrrev_b32 {v(t1)}, 5, {v(tl)}')
    p(f'v_lshl_add_u32 {v(t0)}, {v(t1)}, 15, {v(t0)}')
    p(f'v_add_u32 {v(t0)}, {XB}, {v(t0)}')
    for i in range(8):
        p(f'ds_write_b128 {v(t0)}, {v(XR+4*i,4)} offset:{i*4096}')

    sR2 = 64
    for j in range(8): p(f'v_readlane_b32 s{sR2+j}, {v(r2)}, {8*j}')
    HT = R.alloc(4, 4); HO = R.alloc(4, 4)
    q16 = R.alloc(); rr = R.alloc(); cc = R.alloc()
    p(f'v_lshrrev_b32 {v(q16)}, 4, {v(lane)}')
    p(f'v_bfe_u32 {v(rr)}, {v(lane)}, 2, 2')
    p(f'v_and_b32 {v(cc)}, 3, {v(lane)}')
    p(f'v_lshrrev_b32 {v(t0)}, 1, {v(cc)}')
    p(f'v_lshl_add_u32 {v(t0)}, {v(q16)}, 1, {v(t0)}')
    p(f's_lshl_b32 s59, s{sW}, 3')
    p(f's_and_b32 s59, s59, 31')
    p(f's_lshr_b32 s63, s{sW}, 2')
    p(f's_lshl_b32 s63, s63, 15')
    p(f's_lshl_b32 s72, s{sH}, 12')
    p(f's_add_u32 s63, s63, s72')
    p(f's_add_u32 s63, s63, {XB}')
    for n in range(2):
        p(f'v_add_u32 {v(t1)}, s59, {v(rr)}')
        if n: p(f'v_add_u32 {v(t1)}, 4, {v(t1)}')
        p(f'v_xor_b32 {v(t1)}, {v(t1)}, {v(t0)}')
        p(f'v_lshlrev_b32 {v(t1)}, 4, {v(t1)}')
        p(f'v_lshl_add_u32 {v(t1)}, {v(t0)}, 9, {v(t1)}')
        p(f'v_and_b32 {v(t2)}, 1, {v(cc)}')
        p(f'v_lshl_add_u32 {v(t1)}, {v(t2)}, 3, {v(t1)}')
        p(f'v_add_u32 {v(t1)}, s63, {v(t1)}')
        if n == 0: p('s_waitcnt lgkmcnt(0)')
        p(f'ds_read_b64_tr_b16 {v(HT+2*n,2)}, {v(t1)}')
    p(f'v_and_b32 {v(t0)}, 15, {v(lane)}')
    p(f'v_lshlrev_b32 {v(t0)}, 4, {v(t0)}')
    p(f'v_lshl_add_u32 {v(t0)}, {v(q16)}, 10, {v(t0)}')
    p(f's_lshr_b32 s59, s{sW}, 2')
    p(f's_lshl_b32 s63, s{sT}, 1')
    p(f's_add_u32 s59, s59, s63')
    p(f's_lshl_b32 s59, s59, 15')
    p(f's_add_u32 s59, s59, s72')
    p(f's_and_b32 s63, s{sW}, 3')
    p(f's_lshl_b32 s63, s63, 8')
    p(f's_add_u32 s59, s59, s63')
    if HF_OFF: p(f's_add_u32 s59, s59, {HF_OFF}')
    p('s_waitcnt lgkmcnt(0)')
    for i in range(4):
        p(f'v_lshlrev_b32 {v(t1)}, 16, {v(HT+i)}')
        p(f'v_and_b32 {v(t2)}, 0xffff0000, {v(HT+i)}')
        p(f'v_mul_f32 {v(t1)}, s{sR2+2*i}, {v(t1)}')
        p(f'v_mul_f32 {v(t2)}, s{sR2+2*i+1}, {v(t2)}')
        p(f'v_cvt_pk_bf16_f32 {v(HO+i)}, {v(t1)}, {v(t2)}')
    vm.issue(f'buffer_store_dwordx4 {v(HO,4)}, {v(t0)}, s[{SWS}:{SWS+3}], s59 offen', 'hst')

    ACC = XD
    FR = [R.alloc(32, 4), XR]
    aX = R.alloc(2); aWr = R.alloc(2)
    p(f's_lshr_b32 s73, s{sW}, 2')
    p(f's_bfe_u32 s74, s{sW}, 0x10001')
    p(f's_and_b32 s75, s{sW}, 1')
    p(f'v_and_b32 {v(t0)}, 31, {v(lane)}')
    for e in range(2):
        p(f's_lshl_b32 s59, s73, 2')
        p(f's_add_u32 s59, s59, {2*e}')
        p(f'v_add_u32 {v(t1)}, s59, {v(hh)}')
        p(f'v_xor_b32 {v(t2)}, {v(t0)}, {v(t1)}')
        p(f'v_lshlrev_b32 {v(t2)}, 4, {v(t2)}')
        p(f'v_lshl_add_u32 {v(t2)}, {v(t1)}, 9, {v(t2)}')
        p(f's_lshl_b32 s59, s74, 15')
        p(f's_add_u32 s59, s59, {XB}')
        p(f'v_add_u32 {v(aX+e)}, s59, {v(t2)}')
    p(f'v_and_b32 {v(t0)}, 1, {v(q16)}')
    p(f'v_lshrrev_b32 {v(t1)}, 1, {v(cc)}')
    p(f'v_lshl_add_u32 {v(t0)}, {v(t0)}, 1, {v(t1)}')
    p(f's_lshl_b32 s59, s75, 2')
    p(f'v_add_u32 {v(t0)}, s59, {v(t0)}')
    p(f'v_lshrrev_b32 {v(t1)}, 1, {v(rr)}')
    p(f'v_lshlrev_b32 {v(t1)}, 2, {v(t1)}')
    p(f'v_xor_b32 {v(t0)}, {v(t0)}, {v(t1)}')
    p(f'v_lshlrev_b32 {v(t0)}, 4, {v(t0)}')
    p(f'v_and_b32 {v(t1)}, 1, {v(cc)}')
    p(f'v_lshl_add_u32 {v(t0)}, {v(t1)}, 3, {v(t0)}')
    p(f'v_lshl_add_u32 {v(t1)}, {v(hh)}, 3, {v(rr)}')
    p(f'v_lshl_add_u32 {v(t0)}, {v(t1)}, 7, {v(t0)}')
    p(f's_lshl_b32 s59, s73, 12')
    p(f'v_add_u32 {v(aWr)}, s59, {v(t0)}')
    p(f'v_add_u32 {v(aWr+1)}, {2*24576}, {v(aWr)}')
    for i in range(48): p(f'v_mov_b32 {v(ACC+i)}, 0')
    def reads(c):
        F = FR[c & 1]; slot = c & 3
        for e in range(2):
            p(f'ds_read_b128 {v(F+4*e,4)}, {v(aX+e)} offset:{c*4096}')
        for e in range(2):
            for part in range(3):
                for n in range(2):
                    off = WB + (slot & 1) * 24576 + part * 8192 + e * 2048 + n * 512
                    p(f'ds_read_b64_tr_b16 {v(F+8+(e*3+part)*4+2*n,2)}, {v(aWr+(slot>>1))} offset:{off}', lsrc=f'W{slot}')
    def mfmas(c):
        F = FR[c & 1]
        for e in range(2):
            X = v(F + 4 * e, 4)
            for part in range(3):
                W = v(F + 8 + (e * 3 + part) * 4, 4)
                A = v(ACC + 16 * part, 16)
                if part < 2: p(f'v_mfma_f32_32x32x16_bf16 {A}, {W}, {X}, {A}')
                else: p(f'v_mfma_f32_32x32x16_bf16 {A}, {X}, {W}, {A}')
    vm.wait('W0', ' lgkmcnt(0)')
    p('s_barrier')
    reads(0)
    for c in range(8):
        if c < 7:
            vm.wait(f'W{c+1}', ' lgkmcnt(0)')
            p('s_barrier')
            if c + 4 < 8: dma_w(c + 4)
            reads(c + 1)
        else:
            p('s_waitcnt lgkmcnt(0)')
            p('s_barrier')
        mfmas(c)
    p(f'v_lshlrev_b32 {v(t0)}, 4, {v(lane)}')
    p(f's_and_b32 s59, s{sW}, 3')
    p(f's_mul_i32 s59, s59, 12288')
    p(f'v_add_u32 {v(t0)}, s59, {v(t0)}')
    p(f's_cmp_ge_u32 s{sW}, 4')
    p('s_cbranch_scc1 qkv_hi')
    for i in range(12):
        p(f'ds_write_b128 {v(t0)}, {v(ACC+4*i,4)} offset:{i*1024}')
    p('s_waitcnt lgkmcnt(0)')
    p('s_barrier')
    p('s_branch qkv_done')
    p.label('qkv_hi')
    p('s_barrier')
    TMP = FR[0]
    for half in range(2):
        for i in range(6):
            p(f'ds_read_b128 {v(TMP+4*i,4)}, {v(t0)} offset:{(half*6+i)*1024}')
        p('s_waitcnt lgkmcnt(0)')
        for i in range(12):
            p(f'v_pk_add_f32 {v(ACC+24*half+2*i,2)}, {v(ACC+24*half+2*i,2)}, {v(TMP+2*i,2)}')
    AP = R.alloc(8, 4)
    vm.wait('phi')
    for i in range(4):
        p(f'v_lshl_or_b32 {v(WP+i)}, {v(WP8+2*i+1)}, 16, {v(WP8+2*i)}')
    p(f'v_cmp_eq_u32 vcc, 0, {v(hm)}')
    for i in range(4):
        p(f'v_cndmask_b32 {v(AP+i)}, 0, {v(WP+i)}, vcc')
        p(f'v_cndmask_b32 {v(AP+4+i)}, {v(WP+i)}, 0, vcc') if False else None
    p(f'v_cmp_ne_u32 vcc, 0, {v(hm)}')
    for i in range(4):
        p(f'v_cndmask_b32 {v(AP+4+i)}, 0, {v(WP+i)}, vcc')
    B8 = R.alloc(8, 4); PP = R.alloc(16, 4); E = FR[0]; T8 = R.alloc(8, 2); PH = FR[1]
    PHK = FR[1] + 16
    for which, out in ((0, PH), (1, PHK)):
        for i in range(8):
            p(f'v_cvt_pk_bf16_f32 {v(B8+i)}, {v(ACC+16*which+2*i)}, {v(ACC+16*which+2*i+1)}')
        p(f'v_mfma_f32_32x32x16_bf16 {v(PP,16)}, {v(AP,4)}, {v(B8,4)}, 0')
        p(f'v_mfma_f32_32x32x16_bf16 {v(PP,16)}, {v(AP+4,4)}, {v(B8+4,4)}, {v(PP,16)}')
        softmax_pm(p, PP, E, T8, out, sL2E)
    p(f's_lshl_b32 s59, s{sT}, 3')
    p(f's_add_u32 s59, s59, s{sH}')
    p(f's_lshl_b32 s59, s59, 2')
    p(f's_and_b32 s63, s{sW}, 3')
    p(f's_add_u32 s59, s59, s63')
    p(f's_lshl_b32 s59, s59, 12')
    p(f's_add_u32 s59, s59, {PQ_OFF}')
    p(f'v_lshlrev_b32 {v(t1)}, 4, {v(lane)}')
    for i in range(4):
        vm.issue(f'buffer_store_dwordx4 {v(PH+4*i,4)}, {v(t1)}, s[{SWS}:{SWS+3}], s59 offen offset:{i*1024}', 'pq')
    tk = t0
    p(f'v_and_b32 {v(tk)}, 31, {v(lane)}')
    def maskt(dst, t, tmp):
        p(f'v_bfe_u32 {v(dst)}, {v(t)}, 2, 1')
        p(f'v_and_b32 {v(tmp)}, 1, {v(t)}')
        p(f'v_lshl_or_b32 {v(dst)}, {v(tmp)}, 1, {v(dst)}')
        p(f'v_bfe_u32 {v(tmp)}, {v(t)}, 1, 1')
        p(f'v_lshl_or_b32 {v(dst)}, {v(tmp)}, 2, {v(dst)}')
    maskt(t1, tk, t2)
    p(f's_lshl_b32 s63, s63, 12')
    p(f's_add_u32 s63, s63, 65536')
    p(f'v_lshlrev_b32 {v(t3)}, 7, {v(tk)}')
    p(f'v_add_u32 {v(t3)}, s63, {v(t3)}')
    for i in range(4):
        p(f'v_lshl_add_u32 {v(t2)}, {v(hh)}, 2, {i}')
        p(f'v_xor_b32 {v(t2)}, {v(t2)}, {v(t1)}')
        p(f'v_lshl_add_u32 {v(t2)}, {v(t2)}, 4, {v(t3)}')
        p(f'ds_write_b128 {v(t2)}, {v(PHK+4*i,4)}')
    VA = E
    for i in range(8):
        p(f'v_cvt_pk_bf16_f32 {v(VA+i)}, {v(ACC+32+2*i)}, {v(ACC+32+2*i+1)}')
    p(f'v_bfe_u32 {v(t2)}, {v(lane)}, 4, 1')
    p(f'v_mov_b32 {v(t3)}, 0x3f803f80')
    p(f'v_cmp_eq_u32 vcc, 0, {v(t2)}')
    for i in range(8):
        p(f'v_cndmask_b32 {v(VA+8+i)}, {v(t3)}, {v(VA+i)}, vcc')
        p(f'v_cndmask_b32 {v(VA+16+i)}, {v(VA+i)}, {v(t3)}, vcc')
    KB = ACC
    p(f'v_lshl_add_u32 {v(tk)}, {v(hh)}, 2, {v(rr)}')
    maskt(t1, tk, t2)
    p(f'v_and_b32 {v(t2)}, 1, {v(q16)}')
    p(f'v_lshrrev_b32 {v(t3)}, 1, {v(cc)}')
    p(f'v_lshl_add_u32 {v(t2)}, {v(t2)}, 1, {v(t3)}')
    p(f'v_xor_b32 {v(t2)}, {v(t2)}, {v(t1)}')
    p(f'v_xor_b32 {v(t1)}, 4, {v(t2)}')
    p(f'v_lshlrev_b32 {v(tk)}, 7, {v(tk)}')
    p(f'v_and_b32 {v(t3)}, 1, {v(cc)}')
    p(f'v_lshl_add_u32 {v(tk)}, {v(t3)}, 3, {v(tk)}')
    p(f'v_add_u32 {v(tk)}, s63, {v(tk)}')
    p(f'v_lshl_add_u32 {v(t2)}, {v(t2)}, 4, {v(tk)}')
    p(f'v_lshl_add_u32 {v(t1)}, {v(t1)}, 4, {v(tk)}')
    p('s_waitcnt lgkmcnt(0)')
    for hp_ in range(2):
        for tg in range(2):
            for n in range(2):
                p(f'ds_read_b64_tr_b16 {v(KB+(hp_*2+tg)*4+2*n,2)}, {v(t2 if hp_==0 else t1)} offset:{tg*2048+n*1024}')
    p('s_waitcnt lgkmcnt(0)')
    D0, D1 = PP, ACC + 16
    for hp_, Dd in ((0, D0), (1, D1)):
        for tg in range(2):
            C = '0' if tg == 0 else v(Dd, 16)
            p(f'v_mfma_f32_32x32x16_bf16 {v(Dd,16)}, {v(VA+8+8*hp_+4*tg,4)}, {v(KB+(hp_*2+tg)*4,4)}, {C}')
    p(f'v_and_b32 {v(t0)}, 31, {v(lane)}')
    p(f'v_lshlrev_b32 {v(t0)}, 2, {v(t0)}')
    p(f'v_lshl_add_u32 {v(t1)}, {v(hh)}, 9, {v(t0)}')
    p(f's_mul_i32 s59, s60, {2*17*128}')
    for hp_, Dd in ((0, D0), (1, D1)):
        for r in range(8):
            dd = 8 * (r >> 2) + (r & 3)
            vm.issue(f'buffer_atomic_add_f32 {v(Dd+8*hp_+r)}, {v(t1)}, s[{SKV}:{SKV+3}], s59 offen offset:{hp_*17*128 + dd*128}', 'at')
    p('s_mov_b32 exec_hi, 0')
    for hp_, Dd in ((0, D0), (1, D1)):
        if hp_: p('s_add_u32 s59, s59, 2176')
        vm.issue(f'buffer_atomic_add_f32 {v(Dd+8*(1-hp_))}, {v(t0)}, s[{SKV}:{SKV+3}], s59 offen offset:{16*128}', 'at')
    p.label('qkv_done')
    p('s_endpgm')
    return dict(name='qkv_kernel', vgpr=R.hi, sgpr=102, grid=256, block=512, lds=163840)

def gelu4(p, U, T, sC0, sC1):
    for i in range(4):
        p(f'v_mul_f32 {v(T+i)}, {v(U+i)}, {v(U+i)}')
    for i in range(4):
        p(f'v_fma_f32 {v(T+i)}, {v(T+i)}, s{sC1}, {v(sC0)}')
    for i in range(4):
        p(f'v_mul_f32 {v(T+i)}, {v(T+i)}, {v(U+i)}')
    for i in range(4):
        p(f'v_exp_f32 {v(T+i)}, {v(T+i)}')
    for i in range(4):
        p(f'v_add_f32 {v(T+i)}, 1.0, {v(T+i)}')
    for i in range(4):
        p(f'v_rcp_f32 {v(T+i)}, {v(T+i)}')
    for i in range(4):
        p(f'v_mul_f32 {v(U+i)}, {v(U+i)}, {v(T+i)}')

def u_phase(p, R, vm, lane, sW, SW1, SHF, SB1, SUF, P=5, LB=0):
    sDJ, sFJ = 31, 3
    t0 = R.alloc(); t1 = R.alloc(); t2 = R.alloc(); t3 = R.alloc()
    g = R.alloc(); rr = R.alloc(); cc = R.alloc()
    p(f'v_lshrrev_b32 {v(g)}, 4, {v(lane)}')
    p(f'v_bfe_u32 {v(rr)}, {v(lane)}, 2, 2')
    p(f'v_and_b32 {v(cc)}, 3, {v(lane)}')
    BI = R.alloc(2, 2)
    p(f's_lshl_b32 s56, s{sFJ}, 7')
    p(f's_lshl_b32 s57, s{sW}, 5')
    p(f's_add_u32 s57, s57, s56')
    p(f'v_lshlrev_b32 {v(t0)}, 3, {v(g)}')
    vm.issue(f'buffer_load_dwordx2 {v(BI,2)}, {v(t0)}, s[{SB1}:{SB1+3}], s57 offen', 'b1')
    vD = R.alloc(2)
    p(f'v_lshrrev_b32 {v(t0)}, 3, {v(lane)}')
    p(f'v_mul_u32_u24 {v(t0)}, 2752, {v(t0)}')
    p(f'v_add_u32 {v(t0)}, s56, {v(t0)}')
    p(f'v_and_b32 {v(t1)}, 1, {v(g)}')
    p(f'v_lshlrev_b32 {v(t1)}, 1, {v(t1)}')
    p(f'v_and_b32 {v(t2)}, 7, {v(lane)}')
    p(f'v_xor_b32 {v(t1)}, {v(t1)}, {v(t2)}')
    p(f'v_lshl_add_u32 {v(vD)}, {v(t1)}, 4, {v(t0)}')
    p(f'v_xor_b32 {v(t1)}, 4, {v(t1)}')
    p(f'v_lshl_add_u32 {v(vD+1)}, {v(t1)}, 4, {v(t0)}')
    p(f'v_add_u32 {v(vD+1)}, {8*2752}, {v(vD+1)}')
    vH = R.alloc()
    p(f's_mul_i32 s57, s{sDJ}, 3072')
    p(f'v_lshlrev_b32 {v(vH)}, 4, {v(lane)}')
    p(f'v_add_u32 {v(vH)}, s57, {v(vH)}')
    p(f's_mul_i32 s58, s{sW}, {16*32*2752}')
    p(f's_lshl_b32 s59, s{sW}, 19')
    p(f's_mul_i32 s60, s{sW}, {P*4096}')
    if LB: p(f's_add_u32 s60, s60, {LB}')
    aT = R.alloc(4)
    p(f'v_lshrrev_b32 {v(t0)}, 1, {v(rr)}')
    p(f'v_and_b32 {v(t1)}, 1, {v(g)}')
    p(f'v_lshl_or_b32 {v(t0)}, {v(t1)}, 1, {v(t0)}')
    p(f'v_lshl_add_u32 {v(t1)}, {v(g)}, 3, {v(rr)}')
    p(f'v_lshlrev_b32 {v(t1)}, 7, {v(t1)}')
    p(f'v_lshl_add_u32 {v(t1)}, {v(cc)}, 3, {v(t1)}')
    p(f'v_add_u32 {v(t1)}, s60, {v(t1)}')
    for fb in range(4):
        p(f'v_xor_b32 {v(t2)}, {fb}, {v(t0)}')
        p(f'v_lshl_add_u32 {v(aT+fb)}, {v(t2)}, 5, {v(t1)}')
    ACC = R.alloc(48, 4)
    NF = P + 1
    FH = [R.alloc(12, 4) for _ in range(NF)]
    TT = [R.alloc(16, 4) for _ in range(2)]
    for i in range(48): p(f'v_mov_b32 {v(ACC+i)}, 0')
    NC = 16
    def issue(c):
        slot = c % P
        for j in range(4):
            p(f's_add_u32 m0, s60, {slot*4096 + j*1024}')
            p(f's_add_u32 s61, s58, {(c*32 + (j>>1)*16)*2752}')
            vm.issue(f'buffer_load_dwordx4 {v(vD+(j&1))}, s[{SW1}:{SW1+3}], s61 offen lds', f'c{c}', ldst=f'U{slot}')
        p(f's_add_u32 s61, s59, {c*32768}')
        for db in range(3):
            vm.issue(f'buffer_load_dwordx4 {v(FH[c%NF]+4*db,4)}, {v(vH)}, s[{SHF}:{SHF+3}], s61 offen offset:{db*1024}', f'c{c}')
    def reads(c):
        slot = c % P
        for fb in range(4):
            for n in range(2):
                p(f'ds_read_b64_tr_b16 {v(TT[c&1]+4*fb+2*n,2)}, {v(aT+fb)} offset:{slot*4096+n*512}', lsrc=f'U{slot}')
    def mfmas(c):
        for fb in range(4):
            for db in range(3):
                A = v(ACC + (fb * 3 + db) * 4, 4)
                p(f'v_mfma_f32_16x16x32_bf16 {A}, {v(TT[c&1]+4*fb,4)}, {v(FH[c%NF]+4*db,4)}, {A}')
    for c in range(P): issue(c)
    vm.wait('c0')
    reads(0)
    for c in range(NC):
        p('s_waitcnt lgkmcnt(0)')
        if c + P < NC: issue(c + P)
        if c + 1 < NC:
            vm.wait(f'c{c+1}')
            reads(c + 1)
        mfmas(c)
    p(f'v_lshlrev_b32 {v(t0)}, 4, {v(lane)}')
    p(f'v_add_u32 {v(t1)}, s60, {v(t0)}')
    for i in range(12):
        p(f'ds_write_b128 {v(t1)}, {v(ACC+4*i,4)} offset:{i*1024}')
    p('s_waitcnt lgkmcnt(0)')
    p('s_barrier')
    p(f's_mul_i32 s61, s{sW}, 3072')
    if LB: p(f's_add_u32 s61, s61, {LB}')
    p(f'v_add_u32 {v(t1)}, s61, {v(t0)}')
    for sw in range(4):
        for db in range(3):
            p(f'ds_read_b128 {v(ACC+(sw*3+db)*4,4)}, {v(t1)} offset:{sw*P*4096+db*1024}')
    c0 = -2.0 * LOG2E * 0.7978845608028654
    vC0 = R.alloc()
    p(f'v_mov_b32 {v(vC0)}, {f2u(c0):#x}')
    p(f's_mov_b32 s62, {f2u(c0*0.044715):#x}')
    BF = R.alloc(4, 2)
    p(f'v_lshlrev_b32 {v(BF)}, 16, {v(BI)}')
    p(f'v_and_b32 {v(BF+1)}, 0xffff0000, {v(BI)}')
    p(f'v_lshlrev_b32 {v(BF+2)}, 16, {v(BI+1)}')
    p(f'v_and_b32 {v(BF+3)}, 0xffff0000, {v(BI+1)}')
    p(f's_lshl_b32 s61, s{sFJ}, 2')
    p(f's_add_u32 s61, s61, s{sW}')
    p(f's_lshl_b32 s61, s61, 14')
    p(f's_mul_i32 s63, s{sDJ}, 48')
    p(f'v_and_b32 {v(t0)}, 15, {v(lane)}')
    p(f'v_add_u32 {v(t0)}, s63, {v(t0)}')
    p(f'v_and_b32 {v(t1)}, 1, {v(g)}')
    p(f'v_lshlrev_b32 {v(t1)}, 9, {v(t1)}')
    p(f'v_lshrrev_b32 {v(t2)}, 1, {v(g)}')
    p(f'v_lshl_add_u32 {v(t1)}, {v(t2)}, 3, {v(t1)}')
    p('s_waitcnt lgkmcnt(0)')
    TG = TT[0]
    for db in range(3):
        U = ACC + db * 4
        for h2 in range(2):
            p(f'v_pk_add_f32 {v(U+2*h2,2)}, {v(U+2*h2,2)}, {v(ACC+(3+db)*4+2*h2,2)}')
            p(f'v_pk_add_f32 {v(ACC+(6+db)*4+2*h2,2)}, {v(ACC+(6+db)*4+2*h2,2)}, {v(ACC+(9+db)*4+2*h2,2)}')
            p(f'v_pk_add_f32 {v(U+2*h2,2)}, {v(U+2*h2,2)}, {v(BF+2*h2,2)}')
            p(f'v_pk_add_f32 {v(U+2*h2,2)}, {v(U+2*h2,2)}, {v(ACC+(6+db)*4+2*h2,2)}')
        gelu4(p, U, TG, vC0, 62)
        p(f'v_cvt_pk_bf16_f32 {v(TG+4+2*db)}, {v(U)}, {v(U+1)}')
        p(f'v_cvt_pk_bf16_f32 {v(TG+5+2*db)}, {v(U+2)}, {v(U+3)}')
        p(f'v_add_u32 {v(t2)}, {16*db}, {v(t0)}')
        p(f'v_lshrrev_b32 {v(t3)}, 5, {v(t2)}')
        p(f'v_cmp_gt_u32 vcc, 512, {v(t2)}')
        p(f'v_and_b32 {v(t2)}, 31, {v(t2)}')
        p(f'v_lshl_add_u32 {v(t2)}, {v(t2)}, 4, {v(t1)}')
        p(f'v_lshl_add_u32 {v(t2)}, {v(t3)}, 10, {v(t2)}')
        p(f'v_cndmask_b32 {v(t2)}, -1, {v(t2)}, vcc') if False else None
        p(f'v_mov_b32 {v(t3)}, 0x7fffffff')
        p(f'v_cndmask_b32 {v(t2)}, {v(t3)}, {v(t2)}, vcc')
        vm.issue(f'buffer_store_dwordx2 {v(TG+4+2*db,2)}, {v(t2)}, s[{SUF}:{SUF+3}], s61 offen', 'ust')

def o_phase(p, R, vm, lane, sW, sT, sH, SWS, SKV, PH):
    t0 = R.alloc(); t1 = R.alloc(); t2 = R.alloc()
    KVF = R.alloc(32, 4); ZF = R.alloc(32, 4)
    AK = R.alloc(16, 4); AZ = R.alloc(16, 4)
    for i in range(32):
        p(f'v_mov_b32 {v(KVF+i)}, 0')
        p(f'v_mov_b32 {v(ZF+i)}, 0')
    p(f's_and_b32 s59, s{sW}, 1')
    p(f's_lshl_b32 s60, s{sH}, 1')
    p(f's_add_u32 s60, s60, s59')
    p(f's_mul_i32 s59, s60, {2*17*128}')
    p(f'v_bfe_u32 {v(t0)}, {v(lane)}, 4, 1')
    p(f'v_lshrrev_b32 {v(t1)}, 5, {v(lane)}')
    p(f'v_cmp_eq_u32 vcc, {v(t0)}, {v(t1)}')
    p(f'v_mul_u32_u24 {v(t0)}, {17*128}, {v(t0)}')
    p(f'v_and_b32 {v(t1)}, 15, {v(lane)}')
    p(f'v_lshl_add_u32 {v(t1)}, {v(t1)}, 7, {v(t0)}')
    p('s_and_saveexec_b64 s[62:63], vcc')
    for i in range(8):
        vm.issue(f'buffer_load_dwordx4 {v(KVF+4*i,4)}, {v(t1)}, s[{SKV}:{SKV+3}], s59 offen offset:{i*16}', 'kv')
    for i in range(8):
        vm.issue(f'buffer_load_dwordx4 {v(ZF+4*i,4)}, {v(t0)}, s[{SKV}:{SKV+3}], s59 offen offset:{16*128+i*16}', 'kv')
    p('s_mov_b64 exec, s[62:63]')
    vm.wait('kv')
    for i in range(16):
        p(f'v_cvt_pk_bf16_f32 {v(AK+i)}, {v(KVF+2*i)}, {v(KVF+2*i+1)}')
        p(f'v_cvt_pk_bf16_f32 {v(AZ+i)}, {v(ZF+2*i)}, {v(ZF+2*i+1)}')
    NUM, DEN = KVF, ZF
    for t in range(4):
        p(f'v_mfma_f32_32x32x16_bf16 {v(NUM,16)}, {v(AK+4*t,4)}, {v(PH+4*t,4)}, ' + ('0' if t == 0 else v(NUM, 16)))
    for t in range(4):
        p(f'v_mfma_f32_32x32x16_bf16 {v(DEN,16)}, {v(AZ+4*t,4)}, {v(PH+4*t,4)}, ' + ('0' if t == 0 else v(DEN, 16)))
    RC = KVF + 16
    for h in range(2):
        p(f'v_add_f32 {v(RC+2*h)}, {f2u(1e-6):#x}, {v(DEN+8*h)}')
        p(f'v_rcp_f32 {v(RC+2*h)}, {v(RC+2*h)}')
    OO = AK
    for h in range(2):
        for i in range(4):
            p(f'v_pk_mul_f32 {v(NUM+8*h+2*i,2)}, {v(NUM+8*h+2*i,2)}, {v(RC+2*h,2)} op_sel_hi:[1,0]')
            p(f'v_cvt_pk_bf16_f32 {v(OO+4*h+i)}, {v(NUM+8*h+2*i)}, {v(NUM+8*h+2*i+1)}')
    p(f's_lshl_b32 s59, s60, 17')
    p(f's_bfe_u32 s61, s{sW}, 0x10001')
    p(f's_lshl_b32 s62, s{sT}, 1')
    p(f's_add_u32 s61, s61, s62')
    p(f's_lshl_b32 s61, s61, 10')
    p(f's_add_u32 s59, s59, s61')
    p(f's_add_u32 s59, s59, {OF_OFF}')
    p(f's_add_u32 s61, s59, 65536')
    p(f'v_lshlrev_b32 {v(t0)}, 4, {v(lane)}')
    vm.issue(f'buffer_store_dwordx4 {v(OO,4)}, {v(t0)}, s[{SWS}:{SWS+3}], s59 offen', 'ost')
    vm.issue(f'buffer_store_dwordx4 {v(OO+4,4)}, {v(t0)}, s[{SWS}:{SWS+3}], s61 offen', 'ost')

def k_uo(p):
    R = Regs('v', 1, 256)
    p.label('uo_kernel')
    p('s_cmp_ge_u32 s2, 256')
    p('s_cbranch_scc1 uo_done')
    load_args(p)
    sW = 33
    lane = R.alloc(); t0 = R.alloc()
    p(f'v_and_b32 {v(lane)}, 63, v0')
    p(f'v_lshrrev_b32 {v(t0)}, 6, v0')
    p(f'v_readfirstlane_b32 s{sW}, {v(t0)}')
    p('s_waitcnt lgkmcnt(0)')
    SW1, SHF, SB1, SUF, SWS, SKV = 36, 40, 44, 48, 52, 64
    srd(p, SW1, P_W1, S_ * F_ * 2)
    srd(p, SHF, P_WS, (2 << 20) + 4096, HF_OFF)
    srd(p, SB1, P_B1, F_ * 2)
    srd(p, SUF, P_WS, UF_BYTES, UF_OFF)
    srd(p, SWS, P_WS, 32 << 20)
    srd(p, SKV, P_WS, KV_BYTES, KV_OFF)
    p(f's_cmp_ge_u32 s{sW}, 4')
    p('s_cbranch_scc1 uo_hi')
    p("""
    s_and_b32 s28, s2, 7
    s_lshr_b32 s29, s2, 3
    s_cmp_ge_u32 s29, 31
    s_cbranch_scc1 uo_done
    s_mul_i32 s28, s28, 31
    s_add_u32 s28, s28, s29
    s_cmp_ge_u32 s28, 242
    s_cbranch_scc1 uo_done
    s_mul_i32 s3, s28, 373
    s_lshr_b32 s3, s3, 12
    s_mul_i32 s29, s3, 11
    s_sub_u32 s31, s28, s29
    """)
    m = R.mark()
    u_phase(p, R, VM(p), lane, sW, SW1, SHF, SB1, SUF)
    p('s_branch uo_done')
    p.label('uo_hi')
    R.release(m)
    vm = VM(p)
    sT, sH = 31, 3
    tile_map(p, sT, sH)
    PH = R.alloc(16, 4)
    p(f's_lshl_b32 s59, s{sT}, 3')
    p(f's_add_u32 s59, s59, s{sH}')
    p(f's_lshl_b32 s59, s59, 2')
    p(f's_and_b32 s63, s{sW}, 3')
    p(f's_add_u32 s59, s59, s63')
    p(f's_lshl_b32 s59, s59, 12')
    p(f's_add_u32 s59, s59, {PQ_OFF}')
    p(f'v_lshlrev_b32 {v(t0)}, 4, {v(lane)}')
    for i in range(4):
        vm.issue(f'buffer_load_dwordx4 {v(PH+4*i,4)}, {v(t0)}, s[{SWS}:{SWS+3}], s59 offen offset:{i*1024}', 'pq')
    o_phase(p, R, vm, lane, sW, sT, sH, SWS, SKV, PH)
    p.label('uo_done')
    p('s_endpgm')
    return dict(name='uo_kernel', vgpr=R.hi, sgpr=102, grid=256, block=512, lds=5 * 4096 * 4)

def k_final(p, P=5):
    R = Regs('v', 1, 256)
    vm = VM(p)
    p.label('final_kernel')
    p('s_cmp_ge_u32 s2, 256')
    p('s_cbranch_scc1 final_done')
    st = Stamper(p, 3); st(True); st()
    load_args(p)
    sT, sD, sW = 31, 3, 33
    tile_map(p, sT, sD)
    lane = R.alloc(); t0 = R.alloc(); t1 = R.alloc(); t2 = R.alloc(); t3 = R.alloc()
    p(f'v_and_b32 {v(lane)}, 63, v0')
    p(f'v_lshrrev_b32 {v(t0)}, 6, v0')
    p(f'v_readfirstlane_b32 s{sW}, {v(t0)}')
    p('s_waitcnt lgkmcnt(0)')
    SX, SWO, SW2, SB2, SOUT, SUF, SOF = 36, 40, 44, 48, 52, 64, 68
    srd(p, SX, P_X, S_ * D_ * 2)
    srd(p, SWO, P_WO, D_ * D_ * 2)
    srd(p, SW2, P_W2, F_ * S_ * 2)
    srd(p, SB2, P_B2, S_ * 2)
    srd(p, SOUT, P_OUT, S_ * D_ * 2)
    srd(p, SUF, P_WS, UF_BYTES, UF_OFF)
    srd(p, SOF, P_WS, 2 << 20, OF_OFF)
    hh = R.alloc(); q16 = R.alloc(); rr = R.alloc(); cc = R.alloc()
    p(f'v_lshrrev_b32 {v(hh)}, 5, {v(lane)}')
    p(f'v_lshrrev_b32 {v(q16)}, 4, {v(lane)}')
    p(f'v_bfe_u32 {v(rr)}, {v(lane)}, 2, 2')
    p(f'v_and_b32 {v(cc)}, 3, {v(lane)}')
    XR = R.alloc(8, 2); B2 = R.alloc(); vO = R.alloc()
    p(f's_and_b32 s56, s{sW}, 1')
    p(f's_lshl_b32 s56, s56, 5')
    p(f's_lshl_b32 s57, s{sT}, 6')
    p(f's_add_u32 s56, s56, s57')
    p(f'v_and_b32 {v(t0)}, 31, {v(lane)}')
    p(f'v_add_u32 {v(t0)}, s56, {v(t0)}')
    p(f's_lshr_b32 s56, s{sW}, 1')
    p(f's_lshl_b32 s56, s56, 6')
    p(f's_lshl_b32 s57, s{sD}, 7')
    p(f's_add_u32 s56, s56, s57')
    p(f'v_lshlrev_b32 {v(vO)}, 10, {v(t0)}')
    p(f'v_lshl_add_u32 {v(vO)}, {v(hh)}, 3, {v(vO)}')
    p(f'v_add_u32 {v(vO)}, s56, {v(vO)}')
    for q in range(4):
        vm.issue(f'buffer_load_dwordx2 {v(XR+2*q,2)}, {v(vO)}, s[{SX}:{SX+3}], 0 offen offset:{q*16}', 'x')
    p(f'v_lshlrev_b32 {v(t0)}, 1, {v(t0)}')
    vm.issue(f'buffer_load_ushort {v(B2)}, {v(t0)}, s[{SB2}:{SB2+3}], 0 offen', 'x')
    vD1 = R.alloc(); vD2 = R.alloc(); vF = R.alloc()
    p(f'v_and_b32 {v(t0)}, 1, {v(q16)}')
    p(f'v_lshlrev_b32 {v(t0)}, 2, {v(t0)}')
    p(f'v_and_b32 {v(t1)}, 7, {v(lane)}')
    p(f'v_xor_b32 {v(t0)}, {v(t0)}, {v(t1)}')
    p(f'v_lshlrev_b32 {v(t0)}, 4, {v(t0)}')
    p(f'v_lshrrev_b32 {v(t1)}, 3, {v(lane)}')
    p(f'v_lshl_add_u32 {v(vD1)}, {v(t1)}, 10, {v(t0)}')
    p(f'v_add_u32 {v(vD1)}, s57, {v(vD1)}')
    p(f'v_lshl_add_u32 {v(vD2)}, {v(t1)}, 12, {v(t0)}')
    p(f's_lshl_b32 s57, s{sT}, 7')
    p(f'v_add_u32 {v(vD2)}, s57, {v(vD2)}')
    p(f'v_lshlrev_b32 {v(vF)}, 4, {v(lane)}')
    p(f's_mul_i32 s60, s{sW}, {P*4096}')
    p(f's_lshl_b32 s72, s{sW}, 15')
    p(f's_lshl_b32 s73, s{sW}, 17')
    p(f's_lshl_b32 s74, s{sW}, 17')
    p(f's_lshl_b32 s57, s{sT}, 11')
    p(f's_add_u32 s74, s74, s57')
    p(f's_lshl_b32 s75, s{sW}, 15')
    p(f's_lshl_b32 s57, s{sD}, 11')
    p(f's_add_u32 s75, s75, s57')
    aT = R.alloc(2)
    p(f'v_and_b32 {v(t0)}, 1, {v(q16)}')
    p(f'v_lshlrev_b32 {v(t0)}, 1, {v(t0)}')
    p(f'v_lshrrev_b32 {v(t1)}, 1, {v(rr)}')
    p(f'v_lshl_add_u32 {v(t0)}, {v(t1)}, 2, {v(t0)}')
    p(f'v_lshl_add_u32 {v(t1)}, {v(hh)}, 2, {v(rr)}')
    p(f'v_lshlrev_b32 {v(t1)}, 7, {v(t1)}')
    p(f'v_lshl_add_u32 {v(t1)}, {v(cc)}, 3, {v(t1)}')
    p(f'v_add_u32 {v(t1)}, s60, {v(t1)}')
    p(f'v_lshl_add_u32 {v(aT)}, {v(t0)}, 4, {v(t1)}')
    p(f'v_xor_b32 {v(t0)}, 4, {v(t0)}')
    p(f'v_lshl_add_u32 {v(aT+1)}, {v(t0)}, 4, {v(t1)}')
    ACC = R.alloc(64, 4)
    NF = P + 1
    FF = [R.alloc(16, 4) for _ in range(NF)]
    TT = [R.alloc(16, 4) for _ in range(2)]
    for i in range(64): p(f'v_mov_b32 {v(ACC+i)}, 0')
    NC = 15
    def issue(i):
        slot = i % P
        for j in range(4):
            p(f's_add_u32 m0, s60, {slot*4096 + j*1024}')
            if i < 4:
                p(f's_add_u32 s61, s72, {(i*128 + j*8)*1024}')
                vm.issue(f'buffer_load_dwordx4 {v(vD1)}, s[{SWO}:{SWO+3}], s61 offen lds', f'c{i}', ldst=f'R{slot}')
            else:
                p(f's_add_u32 s61, s73, {((i-4)*128 + j*8)*4096}')
                vm.issue(f'buffer_load_dwordx4 {v(vD2)}, s[{SW2}:{SW2+3}], s61 offen lds', f'c{i}', ldst=f'R{slot}')
        for e in range(2):
            if i < 4:
                p(f's_add_u32 s61, s74, {(i*8 + e)*65536}')
                sr = SOF
            else:
                p(f's_add_u32 s61, s75, {((i-4)*8 + e)*16384}')
                sr = SUF
            for b in range(2):
                vm.issue(f'buffer_load_dwordx4 {v(FF[i%NF]+(e*2+b)*4,4)}, {v(vF)}, s[{sr}:{sr+3}], s61 offen offset:{b*1024}', f'c{i}')
    def reads(i):
        slot = i % P
        for e in range(2):
            for b in range(2):
                for n in range(2):
                    p(f'ds_read_b64_tr_b16 {v(TT[i&1]+(e*2+b)*4+2*n,2)}, {v(aT+b)} offset:{slot*4096+e*2048+n*1024}', lsrc=f'R{slot}')
    def mfmas(i):
        for e in range(2):
            for db in range(2):
                for sb in range(2):
                    A = v(ACC + (db * 2 + sb) * 16, 16)
                    if i < 4: a_, b_ = v(TT[i&1] + (e*2+db)*4, 4), v(FF[i%NF] + (e*2+sb)*4, 4)
                    else:     a_, b_ = v(FF[i%NF] + (e*2+db)*4, 4), v(TT[i&1] + (e*2+sb)*4, 4)
                    p(f'v_mfma_f32_32x32x16_bf16 {A}, {a_}, {b_}, {A}')
    st()
    for i in range(P): issue(i)
    st()
    vm.wait('c0')
    st()
    reads(0)
    for i in range(NC):
        p('s_waitcnt lgkmcnt(0)')
        if i + P < NC: issue(i + P)
        if i + 1 < NC:
            vm.wait(f'c{i+1}')
            reads(i + 1)
        mfmas(i)
        if i in (3, 9): st()
    st()
    p(f'v_add_u32 {v(t1)}, s60, {v(vF)}')
    for i in range(16):
        p(f'ds_write_b128 {v(t1)}, {v(ACC+4*i,4)} offset:{i*1024}')
    p('s_waitcnt lgkmcnt(0)')
    p('s_barrier')
    p(f's_lshl_b32 s61, s{sW}, 12')
    p(f'v_add_u32 {v(t1)}, s61, {v(vF)}')
    for sw in range(4):
        if sw == 3: p('s_waitcnt lgkmcnt(4)')
        for q in range(4):
            p(f'ds_read_b128 {v(ACC+(sw*4+q)*4,4)}, {v(t1)} offset:{sw*P*4096+q*1024}')
    XF = FF[0]
    for i in range(8):
        p(f'v_lshlrev_b32 {v(XF+2*i)}, 16, {v(XR+i)}')
        p(f'v_and_b32 {v(XF+2*i+1)}, 0xffff0000, {v(XR+i)}')
    BB = FF[1]
    p(f'v_lshlrev_b32 {v(BB)}, 16, {v(B2)}')
    for i in range(8):
        p(f'v_pk_add_f32 {v(XF+2*i,2)}, {v(XF+2*i,2)}, {v(BB,2)} op_sel_hi:[1,0]')
    p('s_waitcnt lgkmcnt(0)')
    for i in range(8):
        p(f'v_pk_add_f32 {v(ACC+2*i,2)}, {v(ACC+2*i,2)}, {v(ACC+16+2*i,2)}')
        p(f'v_pk_add_f32 {v(ACC+32+2*i,2)}, {v(ACC+32+2*i,2)}, {v(ACC+48+2*i,2)}')
        p(f'v_pk_add_f32 {v(ACC+2*i,2)}, {v(ACC+2*i,2)}, {v(XF+2*i,2)}')
        p(f'v_pk_add_f32 {v(ACC+2*i,2)}, {v(ACC+2*i,2)}, {v(ACC+32+2*i,2)}')
        p(f'v_cvt_pk_bf16_f32 {v(TT[0]+i)}, {v(ACC+2*i)}, {v(ACC+2*i+1)}')
    for q in range(4):
        vm.issue(f'buffer_store_dwordx2 {v(TT[0]+2*q,2)}, {v(vO)}, s[{SOUT}:{SOUT+3}], 0 offen offset:{q*16}', 'st')
    p('s_waitcnt vmcnt(0)') if STAMPS else None
    st(); st(True); st.flush()
    p.label('final_done')
    p('s_endpgm')
    return dict(name='final_kernel', vgpr=R.hi, sgpr=102, grid=256, block=256, lds=P * 4096 * 4)

def build(kernels, out):
    hdr = open('cdna_kernels/' + NAME + '.s.ref').read().split('\n')
    hdr = [l for l in hdr if l.startswith(';') and '@launch' not in l and 'Override launch' not in l and 'grid=ceil' not in l]
    text = []
    infos = []
    body = []
    for kf in kernels:
        p = Prog()
        info = kf(p)
        n = p.pad_hazards()
        errs = p.check_waitcnt(info['name'])
        for e in sorted(errs): print('WAITCNT', info['name'], e, file=sys.stderr)
        ninst = sum(1 for i in p.ins if i.is_real())
        print(f"{info['name']}: {ninst} instrs, {n} nop-slots padded, vgpr {info['vgpr']}", file=sys.stderr)
        infos.append(info)
        body.append(f".globl {info['name']}\n.p2align 8\n.type {info['name']},@function\n" + p.text())
    text += hdr
    for i in infos:
        text.append(f"; @launch kernel={i['name']} grid=({i['grid']},1,1) block=({i['block']},1,1) lds={i['lds']}")
    text.append('.amdgcn_target "amdgcn-amd-amdhsa--gfx950"\n.text')
    text += body
    text.append('.section .rodata,"a"')
    for i in infos:
        nv = (i['vgpr'] + 7) // 8 * 8
        text.append(f""".p2align 6
.amdhsa_kernel {i['name']}
  .amdhsa_next_free_vgpr {nv}
  .amdhsa_next_free_sgpr {i['sgpr']}
  .amdhsa_accum_offset {nv}
  .amdhsa_group_segment_fixed_size 0
  .amdhsa_kernarg_size 96
  .amdhsa_user_sgpr_count 2
  .amdhsa_user_sgpr_kernarg_segment_ptr 1
  .amdhsa_system_sgpr_workgroup_id_x 1
.end_amdhsa_kernel""")
    open(out, 'w').write('\n'.join(text) + '\n')

if __name__ == '__main__':
    out = sys.argv[1] if len(sys.argv) > 1 else 'cdna_kernels/' + NAME + '.s'
    build([k_zero, k_qkv, k_uo, k_final], out)
```
